```python
import torch

def _softmax(x, axis=-1):
    return torch.softmax(x, dim=axis)
def _gelu(x):
    return torch.nn.functional.gelu(x, approximate="tanh")
def _silu(x):
    return torch.nn.functional.silu(x)
def _sigmoid(x):
    return torch.sigmoid(x)
def _layernorm(x, axis=-1, eps=1e-5):
    m = x.mean(dim=axis, keepdim=True)
    v = x.var(dim=axis, keepdim=True, unbiased=False)
    return (x - m) / torch.sqrt(v + eps)
def _scatter_add(tgt, idx, src, axis=0):
    return tgt.clone().index_add_(axis, idx, src)
def _segment_sum(src, seg, n):
    out = torch.zeros((n,) + src.shape[1:], dtype=src.dtype)
    return out.index_add_(0, seg, src)
def _pad(x, pw):
    flat = tuple(v for pair in reversed(pw) for v in pair)
    return torch.nn.functional.pad(x, flat)

kernel_name = 'concat_heads__ssm_conv_s4d__ssm_conv_h3__prompt'

def setup_inputs():

    _w = (lambda a: (lambda t: t.to(torch.bfloat16) if t.is_floating_point() else t)(torch.as_tensor(a)))
    def _A_setup():
        Bsz, L, D, N = 1, 2048, 1024, 128
        return {
            "u": _w((lambda *s: torch.randn(*s, dtype=torch.bfloat16) * 0.05)(Bsz, L, D)),
            "log_A_real": _w((lambda *s: torch.randn(*s, dtype=torch.bfloat16) * 3.2)(D, N) * 0.5),
            "A_imag": _w((lambda *s: torch.randn(*s, dtype=torch.bfloat16) * 0.05)(D, N) * 3.14),
            "C_real": _w((lambda *s: torch.randn(*s, dtype=torch.bfloat16) * 0.1)(D, N) / N ** 0.5),
            "C_imag": _w((lambda *s: torch.randn(*s, dtype=torch.bfloat16) * 0.1)(D, N) / N ** 0.5),
            "log_dt": _w((lambda *s: torch.randn(*s, dtype=torch.bfloat16) * 0.05)(D) * 0.5 - 4.0),
            "D_skip": _w((lambda *s: torch.randn(*s, dtype=torch.bfloat16) * 0.05)(D)),
        }
    _A_in = _A_setup()

    def _B_setup():
        B, S, D = 1, 2048, 1024
        ks = 4
        return {
            "q": _w((lambda *s: torch.randn(*s, dtype=torch.bfloat16) * 0.05)(B, S, D)),
            "k": _w((lambda *s: torch.randn(*s, dtype=torch.bfloat16) * 0.2)(B, S, D)),
            "v": _w((lambda *s: torch.randn(*s, dtype=torch.bfloat16) * 0.2)(B, S, D)),
            "shift_k": _w((lambda *s: torch.randn(*s, dtype=torch.bfloat16) * 0.2)(D, ks) * 0.5),
            "ssm_k": _w((lambda *s: torch.randn(*s, dtype=torch.bfloat16) * 0.8)(D, S) * (1.0 / S ** 0.5)),
            "ssm_D": _w((lambda *s: torch.randn(*s, dtype=torch.bfloat16) * 0.2)(D)),
        }
    _B_in = _B_setup()

    return {
        "A_u": _A_in["u"],
        "A_log_A_real": _A_in["log_A_real"],
        "A_A_imag": _A_in["A_imag"],
        "A_C_real": _A_in["C_real"],
        "A_C_imag": _A_in["C_imag"],
        "A_log_dt": _A_in["log_dt"],
        "A_D_skip": _A_in["D_skip"],
        "B_q": _B_in["q"],
        "B_k": _B_in["k"],
        "B_v": _B_in["v"],
        "B_shift_k": _B_in["shift_k"],
        "B_ssm_k": _B_in["ssm_k"],
        "B_ssm_D": _B_in["ssm_D"],
    }

def reference(A_u, A_log_A_real, A_A_imag, A_C_real, A_C_imag, A_log_dt, A_D_skip, B_q, B_k, B_v, B_shift_k, B_ssm_k, B_ssm_D):
    def _A_ref(u, log_A_real, A_imag, C_real, C_imag, log_dt, D_skip):
        L = u.shape[1]
        dt = torch.exp(log_dt)
        A = -torch.exp(log_A_real) + 1j * A_imag
        C = (C_real + 1j * C_imag) * dt[:, None]
        pos = (lambda x, dt: x.to(dt))(torch.arange(L), log_dt.dtype)
        P = torch.exp((A * dt[:, None])[:, :, None] * pos[None, None, :])
        K = 2.0 * torch.einsum("dn,dnl->dl", C, P).real
        L2 = 2 * L
        u_t = (lambda x, *d: x.permute(*d))(u, 0, 2, 1)
        Kf = (lambda x, *a, **k: torch.fft.rfft(x.float(), *a, **k))(K, L2)
        Uf = (lambda x, *a, **k: torch.fft.rfft(x.float(), *a, **k))(u_t, L2)
        y = (lambda x, *a, **k: torch.fft.irfft(x, *a, **k).to(torch.bfloat16))(Uf * Kf[None, :, :], L2)[:, :, :L]
        y = (lambda x, *d: x.permute(*d))(y, 0, 2, 1)
        return y + u * D_skip[None, None, :]

    def _B_ref(q, k, v, shift_k, ssm_k, ssm_D):
        B, S, D = q.shape
        ks = shift_k.shape[-1]
        k_pad = _pad(k, ((0, 0), (ks - 1, 0), (0, 0)))
        k_shift = torch.zeros_like(k)
        for t in range(ks):
            k_shift = k_shift + k_pad[:, t:t + S, :] * shift_k[:, ks - 1 - t][None, None, :]
        kv = k_shift * v
        L = 2 * S
        kv_pad = _pad(kv, ((0, 0), (0, S), (0, 0)))
        kf_pad = _pad(ssm_k, ((0, 0), (0, S)))
        kv_f = (lambda x, axes=(-2,-1): torch.fft.rfft2(x.float(), dim=axes))(kv_pad[:, None, :, :], axes=(1, 2))
        kf_f = (lambda x, axes=(-2,-1): torch.fft.rfft2(x.float(), dim=axes))(kf_pad[:, None, :], axes=(1, 2))
        kf_f = (lambda x, *d: x.permute(*d))(kf_f, 1, 2, 0)
        y_f = kv_f * kf_f[None, :, :, :]
        y = (lambda x, s, axes=(-2,-1): torch.fft.irfft2(x, s=s, dim=axes).to(torch.bfloat16))(y_f, (1, L), axes=(1, 2))[:, 0, :S, :]
        y = y + kv * ssm_D[None, None, :]
        return q * y

    a = _A_ref(A_u, A_log_A_real, A_A_imag, A_C_real, A_C_imag, A_log_dt, A_D_skip)
    b = _B_ref(B_q, B_k, B_v, B_shift_k, B_ssm_k, B_ssm_D)
    return torch.concatenate([a, b], axis=-1)
```

```python
import re

TRANS = ("v_exp_f32", "v_log_f32", "v_rcp_f32", "v_rsq_f32", "v_sqrt_f32", "v_sin_f32", "v_cos_f32")

def regs_of(op):
    op = op.strip()
    op = op.lstrip("-")
    m = re.fullmatch(r"abs\((.*)\)", op)
    if m: op = m.group(1)
    m = re.fullmatch(r"\|(.*)\|", op)
    if m: op = m.group(1)
    out = set()
    m = re.fullmatch(r"([vsa])(\d+)", op)
    if m:
        out.add(m.group(1) + m.group(2)); return out
    m = re.fullmatch(r"([vsa])\[(\d+):(\d+)\]", op)
    if m:
        for i in range(int(m.group(2)), int(m.group(3)) + 1):
            out.add(m.group(1) + str(i))
        return out
    if op in ("vcc", "vcc_lo", "vcc_hi"): return {"vcc"}
    if op in ("exec", "exec_lo", "exec_hi"): return {"exec"}
    if op == "m0": return {"m0"}
    return out

class Ins:
    __slots__ = ("text", "kind", "wr", "rd", "mn", "passes", "srcc", "dpp", "storewide")

class Asm:
    def __init__(self):
        self.lines = []
        self.hist = []
        self.n_ins = 0

    def raw(self, text):
        self.lines.append(text)

    def comment(self, text):
        self.lines.append("    ; " + text)

    def _filler(self, n):
        for _ in range(n):
            i = Ins(); i.text = "nop"; i.kind = "nop"; i.wr = set(); i.rd = set(); i.mn = "s_nop"; i.passes = 0; i.srcc = set(); i.dpp = False; i.storewide = False
            self.hist.append(i)

    def nop(self, n):
        while n > 0:
            k = min(n, 16)
            self.lines.append("    s_nop %d" % (k - 1))
            self._filler(k)
            n -= k

    def flush_hazards(self):
        need = 0
        for dist, p in enumerate(reversed(self.hist)):
            req = 0
            if p.kind == "mfma": req = 20
            elif p.kind in ("valu", "trans"): req = 5
            elif p.kind == "vmem" and p.storewide: req = 2
            need = max(need, req - dist)
        if need > 0: self.nop(need)
        self.hist = []

    def label(self, name):
        self.flush_hazards()
        self.lines.append(name + ":")

    def classify(self, mn, ops, mods):
        i = Ins(); i.mn = mn; i.passes = 0; i.srcc = set(); i.dpp = False; i.storewide = False
        allmods = " ".join(mods)
        R = [regs_of(o) for o in ops]
        def union(l):
            s = set()
            for x in l: s |= x
            return s
        if mn.startswith("v_mfma"):
            i.kind = "mfma"; i.wr = R[0]; i.rd = union(R[1:]); i.srcc = R[3]
            if "16x16x32" in mn or "16x16x16" in mn: i.passes = 4
            elif "32x32x16" in mn or "32x32x8" in mn: i.passes = 8
            elif "16x16x4_f32" in mn: i.passes = 108
            elif "32x32x2_f32" in mn: i.passes = 116
            else: raise Exception("unknown mfma " + mn)
        elif mn.startswith("v_"):
            i.kind = "trans" if mn in TRANS else "valu"
            if mn.startswith("v_cmp"):
                i.wr = R[0]; i.rd = union(R[1:])
            elif mn.startswith("v_readfirstlane") or mn.startswith("v_readlane"):
                i.wr = R[0]; i.rd = union(R[1:])
            elif mn.startswith("v_fmac") or mn.startswith("v_pk_fmac"):
                i.wr = R[0]; i.rd = union(R)
            elif mn.startswith("v_permlane") :
                i.wr = union(R); i.rd = union(R); i.dpp = True
            elif mn.startswith("v_add_co") or mn.startswith("v_addc_co") or mn.startswith("v_sub_co"):
                i.wr = R[0] | R[1]; i.rd = union(R[2:])
            elif mn.startswith("v_swap"):
                i.wr = union(R); i.rd = union(R)
            else:
                i.wr = R[0]; i.rd = union(R[1:])
            if "dpp" in mn or "row_" in allmods or "quad_perm" in allmods or "wave_" in allmods:
                i.dpp = True
            i.rd = i.rd | {"exec"}
        elif mn.startswith("ds_"):
            i.kind = "ds"
            if mn.startswith("ds_read") or mn.startswith("ds_bpermute") or mn.startswith("ds_permute") or mn.startswith("ds_swizzle"):
                i.wr = R[0]; i.rd = union(R[1:])
            else:
                i.wr = set(); i.rd = union(R)
        elif mn.startswith("buffer_") or mn.startswith("global_"):
            i.kind = "vmem"
            if "load" in mn:
                i.wr = R[0]; i.rd = union(R[1:])
            else:
                i.wr = set(); i.rd = union(R)
                if "x4" in mn or "x3" in mn: i.storewide = True; i.srcc = R[0] if mn.startswith("buffer_") else R[1]
        elif mn.startswith("s_load") or mn.startswith("s_buffer_load"):
            i.kind = "smem"; i.wr = R[0]; i.rd = union(R[1:])
        elif mn.startswith("s_"):
            i.kind = "salu"
            if mn.startswith("s_cmp") or mn.startswith("s_cbranch") or mn in ("s_waitcnt", "s_barrier", "s_endpgm", "s_branch", "s_setprio", "s_sleep"):
                i.wr = set(); i.rd = union(R)
            elif "saveexec" in mn:
                i.wr = R[0] | {"exec"}; i.rd = union(R[1:]) | {"exec"}
            else:
                i.wr = R[0]; i.rd = union(R[1:])
        else:
            raise Exception("unknown instr " + mn)
        return i

    def required(self, p, c):
        req = 0
        pw_v = {r for r in p.wr if r[0] in "va"}
        pw_s = {r for r in p.wr if r[0] == "s" or r == "vcc"}
        if p.kind in ("valu", "trans"):
            if c.kind == "mfma" and (pw_v & c.rd): req = max(req, 2)
            if c.kind in ("valu", "trans") and c.dpp and (pw_v & c.rd): req = max(req, 2)
            if c.mn.startswith("v_readfirstlane") or c.mn.startswith("v_readlane"):
                if pw_v & c.rd: req = max(req, 1)
                if pw_s & c.rd: req = max(req, 4)
            if p.kind == "trans" and c.kind in ("valu", "mfma", "ds", "vmem") and (pw_v & (c.rd | c.wr)): req = max(req, 1)
            if pw_s and c.kind in ("valu", "trans", "mfma") and (pw_s & c.rd): req = max(req, 2)
            if pw_s and c.kind == "vmem" and (pw_s & c.rd): req = max(req, 5)
            if pw_s and c.kind in ("salu", "smem") and (pw_s & c.rd): req = max(req, 1)
            if "exec" in p.wr and c.kind in ("valu", "trans", "mfma"): req = max(req, 5)
            if ("sdwa" in p.text or "op_sel" in p.text) and c.kind in ("valu", "trans", "mfma") and (pw_v & (c.rd | c.wr)): req = max(req, 1)
        if p.kind == "mfma":
            ps = p.passes
            if ps == 4: t_c_part, t_ab, t_v = 6, 8, 8
            elif ps == 8: t_c_part, t_ab, t_v = 10, 12, 12
            elif ps == 108: t_c_part, t_ab, t_v = 8, 10, 10
            elif ps == 116: t_c_part, t_ab, t_v = 16, 18, 18
            if c.kind == "mfma":
                ab = c.rd - c.srcc
                if pw_v & ab: req = max(req, t_ab)
                if pw_v & c.srcc:
                    if not (p.wr == c.srcc and p.passes == c.passes): req = max(req, t_c_part)
                if (pw_v & c.wr) and not (p.wr == c.wr and p.passes == c.passes): req = max(req, t_c_part)
            elif c.kind in ("valu", "trans", "ds", "vmem"):
                if pw_v & (c.rd | c.wr): req = max(req, t_v)
            if c.kind in ("valu", "trans") and (p.srcc & c.wr) and ps in (4, 8):
                req = max(req, 3 if ps == 4 else 7)
        if p.kind == "vmem" and p.storewide and (p.srcc & c.wr): req = max(req, 2)
        if p.kind == "salu" and "m0" in p.wr and c.kind in ("vmem", "ds"): req = max(req, 1)
        return req

    def op(self, mn, *args):
        ops = []; mods = []
        for a in args:
            a = str(a)
            if re.match(r"^(offset|offen|idxen|sc0|sc1|nt|row_|quad_perm|wave_|bank_mask|row_mask|bound_ctrl|op_sel|neg_|clamp|mul:|div:|offset0|offset1|vmcnt|lgkmcnt|expcnt|lds|dst_sel|src0_sel|src1_sel|dst_unused|off$)", a) and not (a == "off"):
                mods.append(a)
            else:
                ops.append(a)
        c = self.classify(mn, ops, mods)
        c.text = mn + " " + ", ".join(ops) + (" " + " ".join(mods) if mods else "")
        need = 0
        n = len(self.hist)
        for dist in range(min(n, 24)):
            p = self.hist[n - 1 - dist]
            if p.kind == "nop": continue
            r = self.required(p, c)
            need = max(need, r - dist)
        if need > 0: self.nop(need)
        self.lines.append("    " + c.text)
        self.hist.append(c)
        if len(self.hist) > 64: self.hist = self.hist[-32:]
        self.n_ins += 1
        if mn.startswith("s_cbranch") or mn == "s_branch":
            pass

    def branch(self, mn, target):
        self.flush_hazards()
        self.lines.append("    %s %s" % (mn, target))

    def waitcnt(self, vm=None, lgkm=None):
        parts = []
        if vm is not None: parts.append("vmcnt(%d)" % vm)
        if lgkm is not None: parts.append("lgkmcnt(%d)" % lgkm)
        self.lines.append("    s_waitcnt " + " ".join(parts))
        self._filler(1)

    def text(self):
        return "\n".join(self.lines) + "\n"

def vr(base, n=1):
    return "v%d" % base if n == 1 else "v[%d:%d]" % (base, base + n - 1)
def sr(base, n=1):
    return "s%d" % base if n == 1 else "s[%d:%d]" % (base, base + n - 1)
```

```python
import struct, sys
from asmgen import Asm, vr, sr

def f2u(x): return struct.unpack("<I", struct.pack("<f", x))[0]
def hexf(x): return "0x%08x" % f2u(x)

import numpy as np
L2E = 1.4426950408889634
L2E_HI = float(np.float32(L2E)); L2E_LO = float(np.float32(L2E - L2E_HI))
I2PI = 0.15915494309189535
I2PI_HI = float(np.float32(I2PI)); I2PI_LO = float(np.float32(I2PI - I2PI_HI))
LN2 = 0.6931471805599453

HEADER = open("concat_heads__ssm_conv_s4d__ssm_conv_h3__prompt.s.ref").read().split("; Override launch geometry")[0]

def srd(a, s, ptr, nbytes):
    a.op("s_mov_b32", sr(s), sr(ptr))
    a.op("s_and_b32", sr(s + 1), sr(ptr + 1), "0xffff")
    a.op("s_mov_b32", sr(s + 2), hex(nbytes))
    a.op("s_mov_b32", sr(s + 3), "0x00020000")

def accurate_exp(a, dst, x, t0, t1, sL2Ehi, sL2Elo, sLN2):
    a.op("v_mul_f32", vr(t0), sr(sL2Ehi), vr(x))
    a.op("v_fma_f32", vr(t1), vr(x), sr(sL2Ehi), "-" + vr(t0))
    a.op("v_fma_f32", vr(t1), vr(x), sr(sL2Elo), vr(t1))
    a.op("v_exp_f32", vr(dst), vr(t0))
    a.op("v_mul_f32", vr(t1), sr(sLN2), vr(t1))
    a.op("v_fma_f32", vr(dst), vr(dst), vr(t1), vr(dst))

def bf16_round(a, dst, src):
    a.op("v_cvt_pk_bf16_f32", vr(dst), vr(src), vr(src))
    a.op("v_lshlrev_b32", vr(dst), 16, vr(dst))

def gen_k1(a):
    S = 544
    WREG = 64 * S
    a.raw(".p2align 8")
    a.raw(".globl kgen_kernel")
    a.raw(".type kgen_kernel,@function")
    a.raw("kgen_kernel:")
    a.op("s_cmp_ge_u32", "s2", 256)
    a.branch("s_cbranch_scc1", "L_k1_end")
    a.op("s_load_dwordx8", "s[36:43]", "s[0:1]", 8)
    a.op("s_load_dwordx2", "s[44:45]", "s[0:1]", 40)
    a.op("s_load_dwordx2", "s[46:47]", "s[0:1]", 120)
    a.op("v_lshrrev_b32", "v1", 6, "v0")
    a.op("v_readfirstlane_b32", "s3", "v1")
    a.op("v_and_b32", "v1", 63, "v0")
    a.op("s_lshl_b32", "s4", "s2", 2)
    a.op("s_add_u32", "s4", "s4", "s3")
    a.op("s_mul_i32", "s5", "s3", WREG)
    a.op("s_mov_b32", "s50", hexf(L2E_HI)); a.op("s_mov_b32", "s51", hexf(L2E_LO)); a.op("s_mov_b32", "s52", hexf(LN2))
    a.op("s_mov_b32", "s53", hexf(I2PI_HI)); a.op("s_mov_b32", "s54", hexf(I2PI_LO))
    a.waitcnt(lgkm=0)
    srd(a, 8, 36, 262144); srd(a, 12, 38, 262144); srd(a, 16, 40, 262144); srd(a, 20, 42, 262144)
    srd(a, 24, 44, 2048); srd(a, 28, 46, 8 << 20)
    a.op("s_lshl_b32", "s6", "s4", 8)
    a.op("v_lshlrev_b32", "v3", 1, "v1")
    a.op("v_add_u32", "v3", "s6", "v3")
    a.op("s_lshl_b32", "s7", "s4", 1)
    a.op("v_mov_b32", "v8", "s7")
    a.op("buffer_load_ushort", "v8", "v8", "s[24:27]", 0, "offen")
    a.op("v_lshlrev_b32", "v2", 3, "v1")
    a.op("v_add_u32", "v2", "s5", "v2")
    a.op("v_and_b32", "v9", 15, "v1")
    a.op("v_mul_u32_u24", "v9", S, "v9")
    a.op("v_lshrrev_b32", "v14", 4, "v1")
    a.op("v_lshlrev_b32", "v14", 4, "v14")
    a.op("v_add3_u32", "v9", "v9", "v14", "s5")
    for i in range(12):
        a.op("v_mov_b32", vr(100 + i), 0)
    a.waitcnt(vm=0)
    a.op("v_lshlrev_b32", "v8", 16, "v8")
    accurate_exp(a, 15, 8, 90, 91, 50, 51, 52)
    bf16_round(a, 8, 15)

    T0, T1, T2, T3 = 90, 91, 92, 93
    def cmul(d, x, y):
        a.op("v_mul_f32", vr(T0), vr(x + 1), vr(y + 1))
        a.op("v_mul_f32", vr(T1), vr(x + 1), vr(y))
        a.op("v_fma_f32", vr(d), vr(x), vr(y), "-" + vr(T0))
        a.op("v_fma_f32", vr(d + 1), vr(x), vr(y + 1), vr(T1))
    def cexp(d, P):
        a.op("v_mul_f32", vr(T2), hexf(float(P)), "v10")
        accurate_exp(a, T3, T2, T0, T1, 50, 51, 52)
        a.op("v_mul_f32", vr(T2), hexf(float(P)), "v11")
        a.op("v_mul_f32", vr(T0), "s53", vr(T2))
        a.op("v_fma_f32", vr(T1), vr(T2), "s53", "-" + vr(T0))
        a.op("v_fma_f32", vr(T1), vr(T2), "s54", vr(T1))
        a.op("v_fract_f32", vr(T0), vr(T0))
        a.op("v_add_f32", vr(T0), vr(T0), vr(T1))
        a.op("v_cos_f32", vr(d), vr(T0))
        a.op("v_sin_f32", vr(d + 1), vr(T0))
        a.op("v_mul_f32", vr(d), vr(d), vr(T3))
        a.op("v_mul_f32", vr(d + 1), vr(d + 1), vr(T3))
    P = lambda k: 20 + 2 * (k - 1)
    E = lambda k: 40 + 2 * (k - 1)
    B = lambda k: 60 + 2 * (k - 1)
    def wr_g(row, src):
        a.op("v_mov_b32", "v84", vr(src))
        a.op("v_xor_b32", "v85", "0x80000000", vr(src + 1))
        a.op("ds_write_b64", "v2", "v[84:85]", "offset:%d" % (row * S))
    def wr_e(row, src):
        a.op("ds_write_b64", "v2", vr(src, 2), "offset:%d" % ((48 + row) * S))

    for half in range(2):
        off = "offset:%d" % (128 * half)
        a.op("buffer_load_ushort", "v4", "v3", "s[8:11]", 0, "offen", off)
        a.op("buffer_load_ushort", "v5", "v3", "s[12:15]", 0, "offen", off)
        a.op("buffer_load_ushort", "v6", "v3", "s[16:19]", 0, "offen", off)
        a.op("buffer_load_ushort", "v7", "v3", "s[20:23]", 0, "offen", off)
        a.waitcnt(vm=0)
        for r in (4, 5, 6, 7):
            a.op("v_lshlrev_b32", vr(r), 16, vr(r))
        accurate_exp(a, 15, 4, 90, 91, 50, 51, 52)
        bf16_round(a, 15, 15)
        a.op("v_mul_f32", "v10", "-v15", "v8")
        a.op("v_mul_f32", "v11", "v5", "v8")
        a.op("v_mul_f32", "v12", "v6", "v8")
        a.op("v_mul_f32", "v13", "v7", "v8")
        a.op("v_add_f32", "v12", "v12", "v12")
        a.op("v_add_f32", "v13", "v13", "v13")
        cexp(P(1), 1); cexp(P(8), 8); cexp(B(1), 128); cexp(B(2), 256); cexp(B(4), 512); cexp(B(8), 1024)
        cmul(P(2), P(1), P(1)); cmul(P(3), P(2), P(1)); cmul(P(4), P(2), P(2)); cmul(P(5), P(4), P(1))
        cmul(P(6), P(3), P(3)); cmul(P(7), P(4), P(3))
        a.op("v_mov_b32", "v56", 1.0); a.op("v_mov_b32", "v57", 0)
        wr_e(0, 56)
        a.op("v_mov_b32", vr(E(1)), vr(P(8))); a.op("v_mov_b32", vr(E(1) + 1), vr(P(8) + 1))
        wr_e(1, E(1))
        for (k, x, y) in [(2, 1, 1), (3, 2, 1), (4, 2, 2), (5, 4, 1), (6, 3, 3), (7, 4, 3), (8, 4, 4)]:
            cmul(E(k), E(x), E(y)); wr_e(k, E(k))
        for (k, x, y) in [(9, 8, 1), (10, 5, 5), (11, 8, 3), (12, 6, 6), (13, 8, 5), (14, 7, 7), (15, 8, 7)]:
            cmul(56, E(x), E(y)); wr_e(k, 56)
        cmul(B(3), B(1), B(2)); cmul(B(5), B(4), B(1)); cmul(B(6), B(4), B(2)); cmul(B(7), B(4), B(3))
        def rows(Areg, lst):
            for (row, pk) in lst:
                if pk == 0: wr_g(row, Areg)
                else:
                    cmul(82, Areg, P(pk)); wr_g(row, 82)
        rows(12, [(r, r) for r in range(8)])
        for k in range(1, 16):
            if k <= 8: bk = B(k)
            else:
                cmul(78, B(8), B(k - 8)); bk = 78
            cmul(80, 12, bk)
            if k == 1: rows(80, [(8 + r, r) for r in range(8)])
            elif k in (2, 3):
                rows(80, [(16 + 4 * (k - 2) + i, 2 + 2 * i) for i in range(4)])
                if k == 2: rows(80, [(40, 0)])
            elif k < 8: rows(80, [(24 + 2 * (k - 4), 4), (25 + 2 * (k - 4), 8)])
            else: rows(80, [(32 + k - 8, 8)])
        a.waitcnt(lgkm=0)
        for i in range(8):
            for t in range(3):
                a.op("ds_read_b128", vr(112 + 4 * t, 4), "v9", "offset:%d" % (16 * t * S + 64 * i))
            a.op("ds_read_b128", vr(124, 4), "v9", "offset:%d" % (48 * S + 64 * i))
            a.waitcnt(lgkm=0)
            for j in range(4):
                for t in range(3):
                    a.op("v_mfma_f32_16x16x4_f32", vr(100 + 4 * t, 4), vr(112 + 4 * t + j), vr(124 + j), vr(100 + 4 * t, 4))
        a.nop(12)
    a.op("v_lshrrev_b32", "v20", 4, "v1")
    a.op("v_and_b32", "v21", 15, "v1")
    a.op("v_lshlrev_b32", "v21", 3, "v21")
    a.op("v_and_b32", "v22", 1, "v20")
    a.op("v_lshrrev_b32", "v23", 1, "v20")
    a.op("v_cmp_eq_u32", "s[60:61]", 0, "v23")
    a.op("v_cmp_eq_u32", "s[62:63]", 2, "v20")
    for r in range(4):
        a.op("v_lshlrev_b32", "v24", 2, "v22")
        a.op("v_lshl_add_u32", "v24", "v23", 7, "v24")
        a.op("v_add3_u32", "v24", "v24", "v21", r)
        a.op("v_lshl_add_u32", "v24", "v24", 2, "s5")
        a.op("ds_write_b32", "v24", vr(100 + r))
        a.op("v_lshlrev_b32", "v24", 7, "v20")
        a.op("v_add_u32", "v24", 258 + 2 * r, "v24")
        a.op("v_lshlrev_b32", "v25", 8, "v20")
        a.op("v_add_u32", "v25", 4 + [0, 4, 128, 132][r], "v25")
        a.op("v_cndmask_b32", "v24", "v25", "v24", "s[60:61]")
        a.op("v_add_u32", "v24", "v24", "v21")
        a.op("v_lshl_add_u32", "v24", "v24", 2, "s5")
        a.op("ds_write_b32", "v24", vr(104 + r))
        a.op("v_lshlrev_b32", "v24", 9, "v20")
        a.op("v_add_u32", "v24", 1032 + 128 * r, "v24")
        a.op("v_mov_b32", "v25", 2064)
        if r == 0:
            a.op("v_mov_b32", "v26", 256)
            a.op("v_cndmask_b32", "v25", "v25", "v26", "s[62:63]")
        a.op("v_cndmask_b32", "v24", "v25", "v24", "s[60:61]")
        a.op("v_add_u32", "v24", "v24", "v21")
        a.op("v_lshl_add_u32", "v24", "v24", 2, "s5")
        a.op("ds_write_b32", "v24", vr(108 + r))
    a.waitcnt(lgkm=0)
    a.op("s_lshl_b32", "s6", "s4", 12)
    a.op("v_lshlrev_b32", "v30", 4, "v1")
    a.op("v_add_u32", "v30", "s6", "v30")
    a.op("s_mov_b32", "s7", hex(4 << 20))
    for it in range(4):
        for i in range(8):
            a.op("v_lshlrev_b32", "v24", 3, "v1")
            a.op("v_add_u32", "v24", 512 * it + i, "v24")
            a.op("v_cvt_f32_u32", "v24", "v24")
            bf16_round(a, 24, 24)
            a.op("v_cvt_u32_f32", "v24", "v24")
            a.op("v_lshl_add_u32", "v24", "v24", 2, "s5")
            a.op("ds_read_b32", vr(40 + i), "v24")
        a.waitcnt(lgkm=0)
        for p in range(4):
            x0, x1 = 40 + 2 * p, 41 + 2 * p
            a.op("v_cvt_pk_bf16_f32", vr(50 + p), vr(x0), vr(x1))
            a.op("v_lshlrev_b32", "v60", 16, vr(50 + p))
            a.op("v_and_b32", "v61", "0xffff0000", vr(50 + p))
            a.op("v_sub_f32", "v60", vr(x0), "v60")
            a.op("v_sub_f32", "v61", vr(x1), "v61")
            a.op("v_cvt_pk_bf16_f32", vr(54 + p), "v60", "v61")
        a.op("buffer_store_dwordx4", "v[50:53]", "v30", "s[28:31]", 0, "offen", "offset:%d" % (1024 * it))
        a.op("buffer_store_dwordx4", "v[54:57]", "v30", "s[28:31]", "s7", "offen", "offset:%d" % (1024 * it))
    a.label("L_k1_end")
    a.op("s_endpgm")

CPW = 8480
CP = 0
HB = 8 * CPW
MB = HB + 12 * 4096
MSTR = 4160
LDS_K2 = MB + 8 * MSTR

def gen_k2(a):
    a.raw(".p2align 8")
    a.raw(".globl conv_kernel")
    a.raw(".type conv_kernel,@function")
    a.raw("conv_kernel:")
    a.op("s_cmp_ge_u32", "s2", 256)
    a.branch("s_cbranch_scc1", "L_k2_end")
    a.op("s_load_dwordx2", "s[64:65]", "s[0:1]", 0)
    a.op("s_load_dwordx2", "s[66:67]", "s[0:1]", 48)
    a.op("s_load_dwordx8", "s[68:75]", "s[0:1]", 56)
    a.op("s_load_dwordx4", "s[76:79]", "s[0:1]", 88)
    a.op("s_load_dwordx2", "s[80:81]", "s[0:1]", 104)
    a.op("s_load_dwordx2", "s[82:83]", "s[0:1]", 120)
    a.op("s_and_b32", "s3", "s2", 7)
    a.op("s_lshl_b32", "s3", "s3", 5)
    a.op("s_lshr_b32", "s4", "s2", 3)
    a.op("s_add_u32", "s3", "s3", "s4")
    a.op("v_lshrrev_b32", "v1", 6, "v0")
    a.op("v_readfirstlane_b32", "s4", "v1")
    a.op("v_and_b32", "v1", 63, "v0")
    a.op("s_lshl_b32", "s5", "s3", 3)
    a.waitcnt(lgkm=0)
    srd(a, 8, 64, 4 << 20)
    srd(a, 12, 68, 4 << 20)
    srd(a, 16, 70, 4 << 20)
    srd(a, 20, 72, 4 << 20)
    srd(a, 24, 76, 4 << 20)
    srd(a, 28, 80, 8 << 20)
    srd(a, 32, 82, 8 << 20)
    a.op("s_add_u32", "s66", "s66", "s5"); a.op("s_addc_u32", "s67", "s67", 0)
    a.op("s_add_u32", "s78", "s78", "s5"); a.op("s_addc_u32", "s79", "s79", 0)
    a.op("s_lshl_b32", "s6", "s3", 5)
    a.op("s_add_u32", "s74", "s74", "s6"); a.op("s_addc_u32", "s75", "s75", 0)
    a.op("s_load_dwordx2", "s[84:85]", "s[66:67]", 0)
    a.op("s_load_dwordx2", "s[86:87]", "s[78:79]", 0)
    a.op("s_load_dwordx8", "s[88:95]", "s[74:75]", 0)
    a.op("v_lshlrev_b32", "v2", 13, "v0")
    a.op("v_add_u32", "v2", "s5", "v2")
    a.op("v_add_u32", "v3", 4096, "v2")
    a.op("v_subrev_u32", "v4", 6144, "v2")
    a.op("v_subrev_u32", "v5", 2048, "v2")
    def rowloads(dst, s):
        a.op("buffer_load_dwordx2", vr(dst, 2), "v2", sr(s, 4), 0, "offen")
        a.op("buffer_load_dwordx2", vr(dst + 2, 2), "v2", sr(s, 4), 0, "offen", "offset:2048")
        a.op("buffer_load_dwordx2", vr(dst + 4, 2), "v3", sr(s, 4), 0, "offen")
        a.op("buffer_load_dwordx2", vr(dst + 6, 2), "v3", sr(s, 4), 0, "offen", "offset:2048")
    a.op("buffer_load_dwordx2", vr(18, 2), "v4", "s[16:19]", 0, "offen")
    a.op("buffer_load_dwordx2", vr(20, 2), "v4", "s[16:19]", 0, "offen", "offset:2048")
    a.op("buffer_load_dwordx2", vr(22, 2), "v5", "s[16:19]", 0, "offen")
    rowloads(24, 16)
    rowloads(32, 20)
    rowloads(10, 8)
    a.op("s_and_b32", "s7", "s4", 3)
    a.op("s_lshl_b32", "s36", "s3", 2)
    a.op("s_add_u32", "s7", "s7", "s36")
    a.op("s_lshl_b32", "s7", "s7", 12)
    a.op("v_lshlrev_b32", "v6", 4, "v1")
    a.op("v_add_u32", "v6", "s7", "v6")
    a.op("s_mov_b32", "s37", hex(4 << 20))
    a.op("s_cmp_ge_u32", "s4", 4)
    a.branch("s_cbranch_scc1", "L_fb")
    for it in range(4):
        a.op("buffer_load_dwordx4", vr(48 + 4 * it, 4), "v6", "s[32:35]", 0, "offen", "offset:%d" % (1024 * it))
    for it in range(4):
        a.op("buffer_load_dwordx4", vr(64 + 4 * it, 4), "v6", "s[32:35]", "s37", "offen", "offset:%d" % (1024 * it))
    a.branch("s_branch", "L_fd")
    a.label("L_fb")
    for it in range(4):
        a.op("buffer_load_dwordx4", vr(48 + 4 * it, 4), "v6", "s[24:27]", 0, "offen", "offset:%d" % (1024 * it))
    a.label("L_fd")
    rowloads(40, 12)
    a.op("s_mul_i32", "s38", "s4", CPW)
    a.op("s_mul_i32", "s39", "s4", MSTR)
    a.op("s_add_u32", "s39", "s39", MB)
    a.op("s_lshl_b32", "s40", "s4", 13)
    a.op("s_add_u32", "s41", "s4", 4)
    a.op("s_lshl_b32", "s41", "s41", 12)
    a.op("s_cmp_ge_u32", "s4", 4)
    a.op("s_cselect_b32", "s40", "s41", "s40")
    a.op("s_add_u32", "s40", "s40", HB)
    a.op("v_lshrrev_b32", "v7", 4, "v0")
    a.op("v_mul_u32_u24", "v7", MSTR, "v7")
    a.op("v_and_b32", "v8", 15, "v0")
    a.op("v_lshl_add_u32", "v7", "v8", 2, "v7")
    a.op("v_add_u32", "v7", MB, "v7")
    a.op("v_mov_b32", "v8", 0)
    a.op("v_cmp_gt_u32", "vcc", 128, "v0")
    a.op("s_and_saveexec_b64", "s[42:43]", "vcc")
    a.op("ds_write_b32", "v7", "v8")
    a.op("s_mov_b64", "exec", "s[42:43]")
    a.waitcnt(lgkm=0)
    for c in range(4):
        for tau in range(4):
            src = 88 + 2 * c + (tau >> 1)
            if tau & 1: a.op("s_and_b32", sr(44 + 4 * c + tau), sr(src), "0xffff0000")
            else: a.op("s_lshl_b32", sr(44 + 4 * c + tau), sr(src), 16)
    for c in range(4):
        for (dst, src) in ((60, 84), (96, 86)):
            s = src + (c >> 1)
            if c & 1: a.op("s_and_b32", sr(dst + c), sr(s), "0xffff0000")
            else: a.op("s_lshl_b32", sr(dst + c), sr(s), 16)
    a.op("s_mov_b32", "s100", "0x05040100")
    a.op("s_mov_b32", "s101", "0x07060302")
    a.waitcnt(vm=16)
    a.waitcnt(vm=12)
    for row in range(7):
        for h in range(2):
            src = 18 + 2 * row + h
            a.op("v_lshlrev_b32", vr(80 + 4 * row + 2 * h), 16, vr(src))
            a.op("v_and_b32", vr(80 + 4 * row + 2 * h + 1), "0xffff0000", vr(src))
    for r in range(4):
        for h in range(2):
            c0, c1 = 2 * h, 2 * h + 1
            accA, accB, pA, pB, pk = 120, 121, 122, 123, 124
            for ti, tau in enumerate((3, 2, 1, 0)):
                krow = r + 3 - tau
                a.op("v_mul_f32", vr(pA), sr(44 + 4 * c0 + tau), vr(80 + 4 * krow + c0))
                a.op("v_mul_f32", vr(pB), sr(44 + 4 * c1 + tau), vr(80 + 4 * krow + c1))
                a.op("v_cvt_pk_bf16_f32", vr(pk), vr(pA), vr(pB))
                if ti == 0:
                    a.op("v_lshlrev_b32", vr(accA), 16, vr(pk))
                    a.op("v_and_b32", vr(accB), "0xffff0000", vr(pk))
                else:
                    a.op("v_lshlrev_b32", vr(pA), 16, vr(pk))
                    a.op("v_and_b32", vr(pB), "0xffff0000", vr(pk))
                    a.op("v_add_f32", vr(pA), vr(accA), vr(pA))
                    a.op("v_add_f32", vr(pB), vr(accB), vr(pB))
                    a.op("v_cvt_pk_bf16_f32", vr(pk), vr(pA), vr(pB))
                    a.op("v_lshlrev_b32", vr(accA), 16, vr(pk))
                    a.op("v_and_b32", vr(accB), "0xffff0000", vr(pk))
            vsrc = 32 + 2 * r + h
            a.op("v_lshlrev_b32", vr(pA), 16, vr(vsrc))
            a.op("v_and_b32", vr(pB), "0xffff0000", vr(vsrc))
            a.op("v_mul_f32", vr(pA), vr(accA), vr(pA))
            a.op("v_mul_f32", vr(pB), vr(accB), vr(pB))
            a.op("v_cvt_pk_bf16_f32", vr(110 + 2 * r + h), vr(pA), vr(pB))
    a.op("v_lshlrev_b32", "v7", 3, "v0")
    a.op("v_add_u32", "v7", MB + 64, "v7")
    def scatter(base, chbase):
        for c in range(4):
            h = c >> 1; sel = "s101" if (c & 1) else "s100"
            a.op("v_perm_b32", "v120", vr(base + 2 + h), vr(base + 0 + h), sel)
            a.op("v_perm_b32", "v121", vr(base + 6 + h), vr(base + 4 + h), sel)
            a.op("ds_write_b64", "v7", "v[120:121]", "offset:%d" % ((chbase + c) * MSTR))
    scatter(110, 4)
    a.waitcnt(vm=4)
    scatter(10, 0)
    a.op("v_and_b32", "v8", 1, "v1")
    a.op("v_lshlrev_b32", "v8", 1, "v8")
    a.op("v_lshrrev_b32", "v9", 4, "v1")
    a.op("v_lshrrev_b32", "v120", 1, "v1")
    a.op("v_xor_b32", "v9", "v9", "v120")
    a.op("v_and_b32", "v9", 1, "v9")
    a.op("v_add_u32", "v8", "v8", "v9")
    a.op("v_lshlrev_b32", "v8", 4, "v8")
    a.op("v_lshrrev_b32", "v9", 2, "v1")
    a.op("v_lshl_add_u32", "v8", "v9", 6, "v8")
    a.op("v_add_u32", "v8", "s40", "v8")
    for it in range(4):
        a.op("ds_write_b128", "v8", vr(48 + 4 * it, 4), "offset:%d" % (1024 * it))
    a.op("s_cmp_ge_u32", "s4", 4)
    a.branch("s_cbranch_scc1", "L_nolo")
    for it in range(4):
        a.op("ds_write_b128", "v8", vr(64 + 4 * it, 4), "offset:%d" % (4096 + 1024 * it))
    a.label("L_nolo")
    a.op("v_and_b32", "v120", 15, "v1")
    a.op("v_lshrrev_b32", "v121", 4, "v1")
    a.op("v_lshlrev_b32", "v122", 3, "v121")
    a.op("v_sub_u32", "v122", "v122", "v120")
    a.op("v_add_u32", "v122", 1023, "v122")
    a.op("v_lshrrev_b32", "v123", 2, "v122")
    a.op("v_lshlrev_b32", "v123", 5, "v123")
    a.op("v_and_b32", "v122", 3, "v122")
    a.op("v_lshl_add_u32", "v123", "v122", 3, "v123")
    a.op("s_sub_u32", "s41", "s38", 8 * (32 * 15 + 528))
    a.op("v_add_u32", "v8", "s41", "v123")
    a.op("v_and_b32", "v122", 1, "v121")
    a.op("v_lshlrev_b32", "v122", 1, "v122")
    a.op("v_lshrrev_b32", "v123", 1, "v121")
    a.op("s_sub_u32", "s41", "s40", 960)
    for m in range(8):
        a.op("v_add_u32", "v124", 16 - m, "v120")
        a.op("v_lshrrev_b32", "v124", 2, "v124")
        a.op("v_xor_b32", "v124", "v124", "v123")
        a.op("v_and_b32", "v124", 1, "v124")
        a.op("v_add_u32", "v124", "v124", "v122")
        a.op("v_lshlrev_b32", "v124", 4, "v124")
        a.op("v_lshl_add_u32", "v124", "v120", 6, "v124")
        a.op("v_add_u32", vr(130 + m), "s41", "v124")
    a.op("v_lshlrev_b32", "v9", 6, "v120")
    a.op("v_lshl_add_u32", "v9", "v121", 3, "v9")
    a.op("s_add_u32", "s41", "s39", 64)
    a.op("v_add_u32", "v9", "s41", "v9")
    a.op("v_lshlrev_b32", "v124", 3, "v1")
    a.op("s_add_u32", "s41", "s39", 64 + 2032 - 512 * 4)
    a.op("v_sub_u32", "v138", "s41", "v124")
    a.op("v_lshlrev_b32", "v139", 5, "v1")
    a.op("v_add_u32", "v139", "s38", "v139")
    a.op("v_mov_b32", "v140", "0xffff")
    a.op("v_mov_b32", "v129", "v120")
    a.waitcnt(lgkm=0)
    a.op("s_barrier")

    ACC = 144
    TA = 176
    TBH = 208
    def tb(buf, f, d):
        if buf == 0: return TBH + 16 * f + 4 * d
        return 48 + 16 * f + 4 * d
    def ta(buf, jj, rb): return TA + 16 * buf + 8 * jj + 4 * rb

    def build_copies(p):
        for it in range(5):
            off = 2048 * p + 512 * (4 - it)
            a.op("ds_read_b64", "v[120:121]", "v138", "offset:%d" % off)
            a.op("ds_read_b64", "v[122:123]", "v138", "offset:%d" % (off + 8))
            a.waitcnt(lgkm=0)
            N0, N1, N2, N3 = 120, 121, 122, 123
            Q = 240
            a.op("v_alignbit_b32", vr(Q + 0), vr(N3), vr(N3), 16)
            a.op("v_alignbit_b32", vr(Q + 1), vr(N2), vr(N2), 16)
            a.op("v_bfi_b32", vr(Q + 2), "v140", vr(N3), vr(N2))
            a.op("v_bfi_b32", vr(Q + 3), "v140", vr(N2), vr(N1))
            a.op("v_mov_b32", vr(Q + 4), vr(Q + 1))
            a.op("v_alignbit_b32", vr(Q + 5), vr(N1), vr(N1), 16)
            a.op("v_mov_b32", vr(Q + 6), vr(Q + 3))
            a.op("v_bfi_b32", vr(Q + 7), "v140", vr(N1), vr(N0))
            if it == 4:
                a.op("v_cmp_gt_u32", "vcc", 9, "v1")
                a.op("s_and_saveexec_b64", "s[42:43]", "vcc")
            a.op("ds_write_b128", "v139", vr(Q, 4), "offset:%d" % (2048 * it))
            a.op("ds_write_b128", "v139", vr(Q + 4, 4), "offset:%d" % (2048 * it + 16))
            if it == 4:
                a.op("s_mov_b64", "exec", "s[42:43]")
        a.waitcnt(lgkm=0)

    def conv(nf):
        for i in range(32):
            a.op("v_mov_b32", vr(ACC + i), 0)
        steps = [(p, d0) for p in range(2) for d0 in range(16)]
        def issue(p, d0, buf):
            nd = 4 if p == 0 else 2
            for jj in range(2):
                for rb in range(2):
                    off = 256 * (15 - d0) + 4096 * (1 - jj) + 128 * (1 - rb)
                    t = ta(buf, jj, rb)
                    a.op("ds_read_b64", vr(t, 2), "v8", "offset:%d" % off)
                    a.op("ds_read_b64", vr(t + 2, 2), "v8", "offset:%d" % (off + 32))
            for f in range(nf):
                for d in range(nd):
                    off = 64 * (15 - d0) + 1024 * d + 4096 * f
                    a.op("ds_read_b128", vr(tb(buf, f, d), 4), vr(130 + (d0 & 7)), "offset:%d" % off)
        for si, (p, d0) in enumerate(steps):
            buf = si & 1
            if d0 == 0:
                build_copies(p)
                issue(p, d0, buf)
            a.waitcnt(lgkm=0)
            if d0 < 15:
                issue(p, d0 + 1, buf ^ 1)
            if d0 > 0:
                a.op("v_cmp_le_u32", "vcc", d0, "v129")
                for f in range(nf):
                    for k in range(4):
                        r = tb(buf, f, 0) + k
                        a.op("v_cndmask_b32", vr(r), 0, vr(r), "vcc")
            for jj in range(2):
                j = 2 * p + jj
                for c in range(j, 4):
                    d = c - j
                    for f in range(nf):
                        for rb in range(2):
                            acc = ACC + 8 * c + 4 * rb
                            a.op("v_mfma_f32_16x16x32_bf16", vr(acc, 4), vr(ta(buf, jj, rb), 4), vr(tb(buf, f, d), 4), vr(acc, 4))
        for c in range(4):
            for rb in range(2):
                acc = ACC + 8 * c + 4 * rb
                a.op("v_cvt_pk_bf16_f32", "v120", vr(acc), vr(acc + 1))
                a.op("v_cvt_pk_bf16_f32", "v121", vr(acc + 2), vr(acc + 3))
                a.op("ds_write_b64", "v9", "v[120:121]", "offset:%d" % (1024 * c + 32 * rb))

    a.op("s_cmp_ge_u32", "s4", 4)
    a.branch("s_cbranch_scc1", "L_convB")
    conv(2)
    a.branch("s_branch", "L_convDone")
    a.label("L_convB")
    conv(1)
    a.label("L_convDone")
    a.waitcnt(vm=0, lgkm=0)
    a.op("s_barrier")
    for ch in range(8):
        a.op("ds_read_b64", vr(48 + 2 * ch, 2), "v7", "offset:%d" % (ch * MSTR))
    a.op("v_lshlrev_b32", "v2", 14, "v0")
    a.op("v_add_u32", "v2", "s5", "v2")
    for r in range(4):
        a.op("s_mov_b32", sr(36 + r), 4096 * r)
    a.waitcnt(lgkm=0)
    def unp(dst, src, hi):
        if hi: a.op("v_and_b32", vr(dst), "0xffff0000", vr(src))
        else: a.op("v_lshlrev_b32", vr(dst), 16, vr(src))
    for r in range(4):
        for part in range(2):
            for h in range(2):
                c0, c1 = 2 * h, 2 * h + 1
                xsrc = (10 if part == 0 else 110) + 2 * r + h
                dsk = 60 if part == 0 else 96
                unp(120, xsrc, 0); unp(121, xsrc, 1)
                a.op("v_mul_f32", "v120", sr(dsk + c0), "v120")
                a.op("v_mul_f32", "v121", sr(dsk + c1), "v121")
                a.op("v_cvt_pk_bf16_f32", "v122", "v120", "v121")
                unp(120, 122, 0); unp(121, 122, 1)
                unp(123, 48 + 2 * (4 * part + c0) + (r >> 1), r & 1)
                unp(124, 48 + 2 * (4 * part + c1) + (r >> 1), r & 1)
                a.op("v_add_f32", "v120", "v123", "v120")
                a.op("v_add_f32", "v121", "v124", "v121")
                dst = 70 + h
                a.op("v_cvt_pk_bf16_f32", vr(dst), "v120", "v121")
                if part == 1:
                    unp(120, dst, 0); unp(121, dst, 1)
                    unp(123, 40 + 2 * r + h, 0); unp(124, 40 + 2 * r + h, 1)
                    a.op("v_mul_f32", "v120", "v123", "v120")
                    a.op("v_mul_f32", "v121", "v124", "v121")
                    a.op("v_cvt_pk_bf16_f32", vr(dst), "v120", "v121")
            if part == 0:
                a.op("buffer_store_dwordx2", "v[70:71]", "v2", "s[28:31]", sr(36 + r), "offen")
            else:
                a.op("buffer_store_dwordx2", "v[70:71]", "v2", "s[28:31]", sr(36 + r), "offen", "offset:2048")
            a.nop(1)
    a.label("L_k2_end")
    a.op("s_endpgm")

def kd(name, vgpr, sgpr=102):
    acc = (vgpr + 3) // 4 * 4
    return f""".amdhsa_kernel {name}
  .amdhsa_next_free_vgpr {vgpr}
  .amdhsa_next_free_sgpr {sgpr}
  .amdhsa_accum_offset {acc}
  .amdhsa_group_segment_fixed_size 0
  .amdhsa_kernarg_size 128
  .amdhsa_user_sgpr_count 2
  .amdhsa_user_sgpr_kernarg_segment_ptr 1
  .amdhsa_system_sgpr_workgroup_id_x 1
.end_amdhsa_kernel
"""

def main(out):
    a = Asm()
    gen_k1(a)
    gen_k2(a)
    txt = HEADER
    txt += "; @launch kernel=kgen_kernel grid=(256,1,1) block=(256,1,1) lds=%d\n" % (4 * 64 * 544)
    txt += "; @launch kernel=conv_kernel grid=(256,1,1) block=(512,1,1) lds=%d\n" % LDS_K2
    txt += '.amdgcn_target "amdgcn-amd-amdhsa--gfx950"\n.text\n'
    txt += a.text()
    txt += '.section .rodata,"a"\n.p2align 6\n' + kd("kgen_kernel", 128) + ".p2align 6\n" + kd("conv_kernel", 248)
    open(out, "w").write(txt)
    print("instructions:", a.n_ins, "bytes:", len(txt))

main(sys.argv[1] if len(sys.argv) > 1 else "concat_heads__ssm_conv_s4d__ssm_conv_h3__prompt.s")
```

```python
import re

TRANS = ("v_exp_f32", "v_log_f32", "v_rcp_f32", "v_rsq_f32", "v_sqrt_f32", "v_sin_f32", "v_cos_f32")

def regs_of(op):
    op = op.strip()
    op = op.lstrip("-")
    m = re.fullmatch(r"abs\((.*)\)", op)
    if m: op = m.group(1)
    m = re.fullmatch(r"\|(.*)\|", op)
    if m: op = m.group(1)
    out = set()
    m = re.fullmatch(r"([vsa])(\d+)", op)
    if m:
        out.add(m.group(1) + m.group(2)); return out
    m = re.fullmatch(r"([vsa])\[(\d+):(\d+)\]", op)
    if m:
        for i in range(int(m.group(2)), int(m.group(3)) + 1):
            out.add(m.group(1) + str(i))
        return out
    if op in ("vcc", "vcc_lo", "vcc_hi"): return {"vcc"}
    if op in ("exec", "exec_lo", "exec_hi"): return {"exec"}
    if op == "m0": return {"m0"}
    return out

class Ins:
    __slots__ = ("text", "kind", "wr", "rd", "mn", "passes", "srcc", "dpp", "storewide")

class Asm:
    def __init__(self):
        self.lines = []
        self.hist = []
        self.n_ins = 0

    def raw(self, text):
        self.lines.append(text)

    def comment(self, text):
        self.lines.append("    ; " + text)

    def _filler(self, n):
        for _ in range(n):
            i = Ins(); i.text = "nop"; i.kind = "nop"; i.wr = set(); i.rd = set(); i.mn = "s_nop"; i.passes = 0; i.srcc = set(); i.dpp = False; i.storewide = False
            self.hist.append(i)

    def nop(self, n):
        while n > 0:
            k = min(n, 16)
            self.lines.append("    s_nop %d" % (k - 1))
            self._filler(k)
            n -= k

    def flush_hazards(self):
        need = 0
        for dist, p in enumerate(reversed(self.hist)):
            req = 0
            if p.kind == "mfma": req = 20
            elif p.kind in ("valu", "trans"): req = 5
            elif p.kind == "vmem" and p.storewide: req = 2
            need = max(need, req - dist)
        if need > 0: self.nop(need)
        self.hist = []

    def label(self, name):
        self.flush_hazards()
        self.lines.append(name + ":")

    def loop_label(self, name):
        self.lines.append(name + ":")
        self.heads = getattr(self, "heads", {})
        self.heads[name] = []
        self.collect = getattr(self, "collect", [])
        self.collect.append(name)

    def loop_branch(self, mn, name):
        head = self.heads[name]
        need = 0
        n = len(self.hist)
        for k, c in enumerate(head):
            for dist in range(min(n, 24)):
                p = self.hist[n - 1 - dist]
                if p.kind == "nop": continue
                r = self.required(p, c)
                need = max(need, r - (dist + 1 + k))
        if need > 0: self.nop(need)
        self.lines.append("    %s %s" % (mn, name))
        self._filler(1)

    def classify(self, mn, ops, mods):
        i = Ins(); i.mn = mn; i.passes = 0; i.srcc = set(); i.dpp = False; i.storewide = False
        allmods = " ".join(mods)
        R = [regs_of(o) for o in ops]
        def union(l):
            s = set()
            for x in l: s |= x
            return s
        if mn.startswith("v_mfma"):
            i.kind = "mfma"; i.wr = R[0]; i.rd = union(R[1:]); i.srcc = R[3]
            if "16x16x32" in mn or "16x16x16" in mn: i.passes = 4
            elif "32x32x16" in mn or "32x32x8" in mn: i.passes = 8
            elif "16x16x4_f32" in mn: i.passes = 108
            elif "32x32x2_f32" in mn: i.passes = 116
            else: raise Exception("unknown mfma " + mn)
        elif mn.startswith("v_"):
            i.kind = "trans" if mn in TRANS else "valu"
            if mn.startswith("v_cmp"):
                i.wr = R[0]; i.rd = union(R[1:])
            elif mn.startswith("v_readfirstlane") or mn.startswith("v_readlane"):
                i.wr = R[0]; i.rd = union(R[1:])
            elif mn.startswith("v_fmac") or mn.startswith("v_pk_fmac"):
                i.wr = R[0]; i.rd = union(R)
            elif mn.startswith("v_permlane") :
                i.wr = union(R); i.rd = union(R); i.dpp = True
            elif mn.startswith("v_add_co") or mn.startswith("v_addc_co") or mn.startswith("v_sub_co"):
                i.wr = R[0] | R[1]; i.rd = union(R[2:])
            elif mn.startswith("v_swap"):
                i.wr = union(R); i.rd = union(R)
            else:
                i.wr = R[0]; i.rd = union(R[1:])
            if "dpp" in mn or "row_" in allmods or "quad_perm" in allmods or "wave_" in allmods:
                i.dpp = True
            i.rd = i.rd | {"exec"}
        elif mn.startswith("ds_"):
            i.kind = "ds"
            if mn.startswith("ds_read") or mn.startswith("ds_bpermute") or mn.startswith("ds_permute") or mn.startswith("ds_swizzle"):
                i.wr = R[0]; i.rd = union(R[1:])
            else:
                i.wr = set(); i.rd = union(R)
        elif mn.startswith("buffer_") or mn.startswith("global_"):
            i.kind = "vmem"
            if "load" in mn:
                i.wr = R[0]; i.rd = union(R[1:])
            else:
                i.wr = set(); i.rd = union(R)
                if "x4" in mn or "x3" in mn: i.storewide = True; i.srcc = R[0] if mn.startswith("buffer_") else R[1]
        elif mn.startswith("s_load") or mn.startswith("s_buffer_load"):
            i.kind = "smem"; i.wr = R[0]; i.rd = union(R[1:])
        elif mn.startswith("s_"):
            i.kind = "salu"
            if mn.startswith("s_cmp") or mn.startswith("s_cbranch") or mn in ("s_waitcnt", "s_barrier", "s_endpgm", "s_branch", "s_setprio", "s_sleep"):
                i.wr = set(); i.rd = union(R)
            elif "saveexec" in mn:
                i.wr = R[0] | {"exec"}; i.rd = union(R[1:]) | {"exec"}
            else:
                i.wr = R[0]; i.rd = union(R[1:])
        else:
            raise Exception("unknown instr " + mn)
        return i

    def required(self, p, c):
        req = 0
        pw_v = {r for r in p.wr if r[0] in "va"}
        pw_s = {r for r in p.wr if r[0] == "s" or r == "vcc"}
        if p.kind in ("valu", "trans"):
            if c.kind == "mfma" and (pw_v & c.rd): req = max(req, 2)
            if c.kind in ("valu", "trans") and c.dpp and (pw_v & c.rd): req = max(req, 2)
            if c.mn.startswith("v_readfirstlane") or c.mn.startswith("v_readlane"):
                if pw_v & c.rd: req = max(req, 1)
                if pw_s & c.rd: req = max(req, 4)
            if p.kind == "trans" and c.kind in ("valu", "mfma", "ds", "vmem") and (pw_v & (c.rd | c.wr)): req = max(req, 1)
            if pw_s and c.kind in ("valu", "trans", "mfma") and (pw_s & c.rd): req = max(req, 2)
            if pw_s and c.kind == "vmem" and (pw_s & c.rd): req = max(req, 5)
            if pw_s and c.kind in ("salu", "smem") and (pw_s & c.rd): req = max(req, 1)
            if "exec" in p.wr and c.kind in ("valu", "trans", "mfma"): req = max(req, 5)
            if ("sdwa" in p.text or "op_sel" in p.text) and c.kind in ("valu", "trans", "mfma") and (pw_v & (c.rd | c.wr)): req = max(req, 1)
        if p.kind == "mfma":
            ps = p.passes
            if ps == 4: t_c_part, t_ab, t_v = 6, 8, 8
            elif ps == 8: t_c_part, t_ab, t_v = 10, 12, 12
            elif ps == 108: t_c_part, t_ab, t_v = 8, 10, 10
            elif ps == 116: t_c_part, t_ab, t_v = 16, 18, 18
            if c.kind == "mfma":
                ab = c.rd - c.srcc
                if pw_v & ab: req = max(req, t_ab)
                if pw_v & c.srcc:
                    if not (p.wr == c.srcc and p.passes == c.passes): req = max(req, t_c_part)
                if (pw_v & c.wr) and not (p.wr == c.wr and p.passes == c.passes): req = max(req, t_c_part)
            elif c.kind in ("valu", "trans", "ds", "vmem"):
                if pw_v & (c.rd | c.wr): req = max(req, t_v)
            if c.kind in ("valu", "trans") and (p.srcc & c.wr) and ps in (4, 8):
                req = max(req, 3 if ps == 4 else 7)
        if p.kind == "vmem" and p.storewide and (p.srcc & c.wr): req = max(req, 2)
        if p.kind == "salu" and "m0" in p.wr and c.kind in ("vmem", "ds"): req = max(req, 1)
        return req

    def op(self, mn, *args):
        ops = []; mods = []
        for a in args:
            a = str(a)
            if re.match(r"^(offset|offen|idxen|sc0|sc1|nt|row_|quad_perm|wave_|bank_mask|row_mask|bound_ctrl|op_sel|neg_|clamp|mul:|div:|offset0|offset1|vmcnt|lgkmcnt|expcnt|lds|dst_sel|src0_sel|src1_sel|dst_unused|off$)", a) and not (a == "off"):
                mods.append(a)
            else:
                ops.append(a)
        c = self.classify(mn, ops, mods)
        c.text = mn + " " + ", ".join(ops) + (" " + " ".join(mods) if mods else "")
        need = 0
        n = len(self.hist)
        for dist in range(min(n, 24)):
            p = self.hist[n - 1 - dist]
            if p.kind == "nop": continue
            r = self.required(p, c)
            need = max(need, r - dist)
        if need > 0: self.nop(need)
        self.lines.append("    " + c.text)
        self.hist.append(c)
        for nm in getattr(self, "collect", []):
            if len(self.heads[nm]) < 24: self.heads[nm].append(c)
        if len(self.hist) > 64: self.hist = self.hist[-32:]
        self.n_ins += 1
        if mn.startswith("s_cbranch") or mn == "s_branch":
            pass

    def branch(self, mn, target):
        self.flush_hazards()
        self.lines.append("    %s %s" % (mn, target))

    def waitcnt(self, vm=None, lgkm=None):
        parts = []
        if vm is not None: parts.append("vmcnt(%d)" % vm)
        if lgkm is not None: parts.append("lgkmcnt(%d)" % lgkm)
        self.lines.append("    s_waitcnt " + " ".join(parts))
        self._filler(1)

    def text(self):
        return "\n".join(self.lines) + "\n"

def vr(base, n=1):
    return "v%d" % base if n == 1 else "v[%d:%d]" % (base, base + n - 1)
def sr(base, n=1):
    return "s%d" % base if n == 1 else "s[%d:%d]" % (base, base + n - 1)
```

```python
import struct, sys
from asmgen import Asm, vr, sr

def f2u(x): return struct.unpack("<I", struct.pack("<f", x))[0]
def hexf(x): return "0x%08x" % f2u(x)

import numpy as np
L2E = 1.4426950408889634
L2E_HI = float(np.float32(L2E)); L2E_LO = float(np.float32(L2E - L2E_HI))
I2PI = 0.15915494309189535
I2PI_HI = float(np.float32(I2PI)); I2PI_LO = float(np.float32(I2PI - I2PI_HI))
LN2 = 0.6931471805599453

HEADER = open("concat_heads__ssm_conv_s4d__ssm_conv_h3__prompt.s.ref").read().split("; Override launch geometry")[0]

def srd(a, s, ptr, nbytes):
    a.op("s_mov_b32", sr(s), sr(ptr))
    a.op("s_and_b32", sr(s + 1), sr(ptr + 1), "0xffff")
    a.op("s_mov_b32", sr(s + 2), hex(nbytes))
    a.op("s_mov_b32", sr(s + 3), "0x00020000")

def accurate_exp(a, dst, x, t0, t1, sL2Ehi, sL2Elo, sLN2):
    a.op("v_mul_f32", vr(t0), sr(sL2Ehi), vr(x))
    a.op("v_fma_f32", vr(t1), vr(x), sr(sL2Ehi), "-" + vr(t0))
    a.op("v_fma_f32", vr(t1), vr(x), sr(sL2Elo), vr(t1))
    a.op("v_exp_f32", vr(dst), vr(t0))
    a.op("v_mul_f32", vr(t1), sr(sLN2), vr(t1))
    a.op("v_fma_f32", vr(dst), vr(dst), vr(t1), vr(dst))

def bf16_round(a, dst, src):
    a.op("v_cvt_pk_bf16_f32", vr(dst), vr(src), vr(src))
    a.op("v_lshlrev_b32", vr(dst), 16, vr(dst))

def gen_k1(a):
    S = 544
    WREG = 64 * S
    a.raw(".p2align 8")
    a.raw(".globl kgen_kernel")
    a.raw(".type kgen_kernel,@function")
    a.raw("kgen_kernel:")
    a.op("s_cmp_ge_u32", "s2", 256)
    a.branch("s_cbranch_scc1", "L_k1_end")
    a.op("s_load_dwordx8", "s[36:43]", "s[0:1]", 8)
    a.op("s_load_dwordx2", "s[44:45]", "s[0:1]", 40)
    a.op("s_load_dwordx2", "s[46:47]", "s[0:1]", 120)
    a.op("v_lshrrev_b32", "v1", 6, "v0")
    a.op("v_readfirstlane_b32", "s3", "v1")
    a.op("v_and_b32", "v1", 63, "v0")
    a.op("s_lshl_b32", "s4", "s2", 2)
    a.op("s_add_u32", "s4", "s4", "s3")
    a.op("s_mul_i32", "s5", "s3", WREG)
    a.op("s_mov_b32", "s50", hexf(L2E_HI)); a.op("s_mov_b32", "s51", hexf(L2E_LO)); a.op("s_mov_b32", "s52", hexf(LN2))
    a.op("s_mov_b32", "s53", hexf(I2PI_HI)); a.op("s_mov_b32", "s54", hexf(I2PI_LO))
    a.waitcnt(lgkm=0)
    srd(a, 8, 36, 262144); srd(a, 12, 38, 262144); srd(a, 16, 40, 262144); srd(a, 20, 42, 262144)
    srd(a, 24, 44, 2048); srd(a, 28, 46, 8 << 20)
    a.op("s_lshl_b32", "s6", "s4", 8)
    a.op("v_lshlrev_b32", "v3", 1, "v1")
    a.op("v_add_u32", "v3", "s6", "v3")
    a.op("s_lshl_b32", "s7", "s4", 1)
    a.op("v_mov_b32", "v8", "s7")
    a.op("buffer_load_ushort", "v8", "v8", "s[24:27]", 0, "offen")
    a.op("v_lshlrev_b32", "v2", 3, "v1")
    a.op("v_add_u32", "v2", "s5", "v2")
    a.op("v_and_b32", "v9", 15, "v1")
    a.op("v_mul_u32_u24", "v9", S, "v9")
    a.op("v_lshrrev_b32", "v14", 4, "v1")
    a.op("v_lshlrev_b32", "v14", 4, "v14")
    a.op("v_add3_u32", "v9", "v9", "v14", "s5")
    for i in range(12):
        a.op("v_mov_b32", vr(100 + i), 0)
    a.waitcnt(vm=0)
    a.op("v_lshlrev_b32", "v8", 16, "v8")
    accurate_exp(a, 15, 8, 90, 91, 50, 51, 52)
    bf16_round(a, 8, 15)

    T0, T1, T2, T3 = 90, 91, 92, 93
    def cmul(d, x, y):
        a.op("v_mul_f32", vr(T0), vr(x + 1), vr(y + 1))
        a.op("v_mul_f32", vr(T1), vr(x + 1), vr(y))
        a.op("v_fma_f32", vr(d), vr(x), vr(y), "-" + vr(T0))
        a.op("v_fma_f32", vr(d + 1), vr(x), vr(y + 1), vr(T1))
    def cexp(d, P):
        a.op("v_mul_f32", vr(T2), hexf(float(P)), "v10")
        accurate_exp(a, T3, T2, T0, T1, 50, 51, 52)
        a.op("v_mul_f32", vr(T2), hexf(float(P)), "v11")
        a.op("v_mul_f32", vr(T0), "s53", vr(T2))
        a.op("v_fma_f32", vr(T1), vr(T2), "s53", "-" + vr(T0))
        a.op("v_fma_f32", vr(T1), vr(T2), "s54", vr(T1))
        a.op("v_fract_f32", vr(T0), vr(T0))
        a.op("v_add_f32", vr(T0), vr(T0), vr(T1))
        a.op("v_cos_f32", vr(d), vr(T0))
        a.op("v_sin_f32", vr(d + 1), vr(T0))
        a.op("v_mul_f32", vr(d), vr(d), vr(T3))
        a.op("v_mul_f32", vr(d + 1), vr(d + 1), vr(T3))
    P = lambda k: 20 + 2 * (k - 1)
    E = lambda k: 40 + 2 * (k - 1)
    B = lambda k: 60 + 2 * (k - 1)
    def wr_g(row, src):
        a.op("v_mov_b32", "v84", vr(src))
        a.op("v_xor_b32", "v85", "0x80000000", vr(src + 1))
        a.op("ds_write_b64", "v2", "v[84:85]", "offset:%d" % (row * S))
    def wr_e(row, src):
        a.op("ds_write_b64", "v2", vr(src, 2), "offset:%d" % ((48 + row) * S))

    for half in range(2):
        off = "offset:%d" % (128 * half)
        a.op("buffer_load_ushort", "v4", "v3", "s[8:11]", 0, "offen", off)
        a.op("buffer_load_ushort", "v5", "v3", "s[12:15]", 0, "offen", off)
        a.op("buffer_load_ushort", "v6", "v3", "s[16:19]", 0, "offen", off)
        a.op("buffer_load_ushort", "v7", "v3", "s[20:23]", 0, "offen", off)
        a.waitcnt(vm=0)
        for r in (4, 5, 6, 7):
            a.op("v_lshlrev_b32", vr(r), 16, vr(r))
        accurate_exp(a, 15, 4, 90, 91, 50, 51, 52)
        bf16_round(a, 15, 15)
        a.op("v_mul_f32", "v10", "-v15", "v8")
        a.op("v_mul_f32", "v11", "v5", "v8")
        a.op("v_mul_f32", "v12", "v6", "v8")
        a.op("v_mul_f32", "v13", "v7", "v8")
        a.op("v_add_f32", "v12", "v12", "v12")
        a.op("v_add_f32", "v13", "v13", "v13")
        cexp(P(1), 1); cexp(P(8), 8); cexp(B(1), 128); cexp(B(2), 256); cexp(B(4), 512); cexp(B(8), 1024)
        cmul(P(2), P(1), P(1)); cmul(P(3), P(2), P(1)); cmul(P(4), P(2), P(2)); cmul(P(5), P(4), P(1))
        cmul(P(6), P(3), P(3)); cmul(P(7), P(4), P(3))
        a.op("v_mov_b32", "v56", 1.0); a.op("v_mov_b32", "v57", 0)
        wr_e(0, 56)
        a.op("v_mov_b32", vr(E(1)), vr(P(8))); a.op("v_mov_b32", vr(E(1) + 1), vr(P(8) + 1))
        wr_e(1, E(1))
        for (k, x, y) in [(2, 1, 1), (3, 2, 1), (4, 2, 2), (5, 4, 1), (6, 3, 3), (7, 4, 3), (8, 4, 4)]:
            cmul(E(k), E(x), E(y)); wr_e(k, E(k))
        for (k, x, y) in [(9, 8, 1), (10, 5, 5), (11, 8, 3), (12, 6, 6), (13, 8, 5), (14, 7, 7), (15, 8, 7)]:
            cmul(56, E(x), E(y)); wr_e(k, 56)
        cmul(B(3), B(1), B(2)); cmul(B(5), B(4), B(1)); cmul(B(6), B(4), B(2)); cmul(B(7), B(4), B(3))
        def rows(Areg, lst):
            for (row, pk) in lst:
                if pk == 0: wr_g(row, Areg)
                else:
                    cmul(82, Areg, P(pk)); wr_g(row, 82)
        rows(12, [(r, r) for r in range(8)])
        for k in range(1, 16):
            if k <= 8: bk = B(k)
            else:
                cmul(78, B(8), B(k - 8)); bk = 78
            cmul(80, 12, bk)
            if k == 1: rows(80, [(8 + r, r) for r in range(8)])
            elif k in (2, 3):
                rows(80, [(16 + 4 * (k - 2) + i, 2 + 2 * i) for i in range(4)])
                if k == 2: rows(80, [(40, 0)])
            elif k < 8: rows(80, [(24 + 2 * (k - 4), 4), (25 + 2 * (k - 4), 8)])
            else: rows(80, [(32 + k - 8, 8)])
        a.waitcnt(lgkm=0)
        for i in range(8):
            for t in range(3):
                a.op("ds_read_b128", vr(112 + 4 * t, 4), "v9", "offset:%d" % (16 * t * S + 64 * i))
            a.op("ds_read_b128", vr(124, 4), "v9", "offset:%d" % (48 * S + 64 * i))
            a.waitcnt(lgkm=0)
            for j in range(4):
                for t in range(3):
                    a.op("v_mfma_f32_16x16x4_f32", vr(100 + 4 * t, 4), vr(112 + 4 * t + j), vr(124 + j), vr(100 + 4 * t, 4))
        a.nop(12)
    a.op("v_lshrrev_b32", "v20", 4, "v1")
    a.op("v_and_b32", "v21", 15, "v1")
    a.op("v_lshlrev_b32", "v21", 3, "v21")
    a.op("v_and_b32", "v22", 1, "v20")
    a.op("v_lshrrev_b32", "v23", 1, "v20")
    a.op("v_cmp_eq_u32", "s[60:61]", 0, "v23")
    a.op("v_cmp_eq_u32", "s[62:63]", 2, "v20")
    for r in range(4):
        a.op("v_lshlrev_b32", "v24", 2, "v22")
        a.op("v_lshl_add_u32", "v24", "v23", 7, "v24")
        a.op("v_add3_u32", "v24", "v24", "v21", r)
        a.op("v_lshl_add_u32", "v24", "v24", 2, "s5")
        a.op("ds_write_b32", "v24", vr(100 + r))
        a.op("v_lshlrev_b32", "v24", 7, "v20")
        a.op("v_add_u32", "v24", 258 + 2 * r, "v24")
        a.op("v_lshlrev_b32", "v25", 8, "v20")
        a.op("v_add_u32", "v25", 4 + [0, 4, 128, 132][r], "v25")
        a.op("v_cndmask_b32", "v24", "v25", "v24", "s[60:61]")
        a.op("v_add_u32", "v24", "v24", "v21")
        a.op("v_lshl_add_u32", "v24", "v24", 2, "s5")
        a.op("ds_write_b32", "v24", vr(104 + r))
        a.op("v_lshlrev_b32", "v24", 9, "v20")
        a.op("v_add_u32", "v24", 1032 + 128 * r, "v24")
        a.op("v_mov_b32", "v25", 2064)
        if r == 0:
            a.op("v_mov_b32", "v26", 256)
            a.op("v_cndmask_b32", "v25", "v25", "v26", "s[62:63]")
        a.op("v_cndmask_b32", "v24", "v25", "v24", "s[60:61]")
        a.op("v_add_u32", "v24", "v24", "v21")
        a.op("v_lshl_add_u32", "v24", "v24", 2, "s5")
        a.op("ds_write_b32", "v24", vr(108 + r))
    a.waitcnt(lgkm=0)
    a.op("s_lshl_b32", "s6", "s4", 12)
    a.op("v_lshlrev_b32", "v30", 4, "v1")
    a.op("v_add_u32", "v30", "s6", "v30")
    a.op("s_mov_b32", "s7", hex(4 << 20))
    for it in range(4):
        for i in range(8):
            a.op("v_lshlrev_b32", "v24", 3, "v1")
            a.op("v_add_u32", "v24", 512 * it + i, "v24")
            a.op("v_cvt_f32_u32", "v24", "v24")
            bf16_round(a, 24, 24)
            a.op("v_cvt_u32_f32", "v24", "v24")
            a.op("v_lshl_add_u32", "v24", "v24", 2, "s5")
            a.op("ds_read_b32", vr(40 + i), "v24")
        a.waitcnt(lgkm=0)
        for p in range(4):
            x0, x1 = 40 + 2 * p, 41 + 2 * p
            a.op("v_cvt_pk_bf16_f32", vr(50 + p), vr(x0), vr(x1))
            a.op("v_lshlrev_b32", "v60", 16, vr(50 + p))
            a.op("v_and_b32", "v61", "0xffff0000", vr(50 + p))
            a.op("v_sub_f32", "v60", vr(x0), "v60")
            a.op("v_sub_f32", "v61", vr(x1), "v61")
            a.op("v_cvt_pk_bf16_f32", vr(54 + p), "v60", "v61")
        a.op("buffer_store_dwordx4", "v[50:53]", "v30", "s[28:31]", 0, "offen", "offset:%d" % (1024 * it))
        a.op("buffer_store_dwordx4", "v[54:57]", "v30", "s[28:31]", "s7", "offen", "offset:%d" % (1024 * it))
    a.label("L_k1_end")
    a.op("s_endpgm")

CPW = 8480
CP = 0
HB = 8 * CPW
MB = HB + 12 * 4096
MSTR = 4160
LDS_K2 = MB + 8 * MSTR

import os
STAMP = os.environ.get("STAMP")
stamp_n = [0]
def stamp(a):
    if not STAMP: return
    i = stamp_n[0]; stamp_n[0] += 1
    a.op("s_memtime", "s[42:43]")
    a.waitcnt(lgkm=0)
    a.op("v_mov_b32", vr(250), "s42")
    a.op("v_writelane_b32", vr(251), "s42", i)

def gen_k2(a):
    a.raw(".p2align 8")
    a.raw(".globl conv_kernel")
    a.raw(".type conv_kernel,@function")
    a.raw("conv_kernel:")
    a.op("s_cmp_ge_u32", "s2", 256)
    a.branch("s_cbranch_scc1", "L_k2_end")
    a.op("s_load_dwordx2", "s[64:65]", "s[0:1]", 0)
    a.op("s_load_dwordx2", "s[66:67]", "s[0:1]", 48)
    a.op("s_load_dwordx8", "s[68:75]", "s[0:1]", 56)
    a.op("s_load_dwordx4", "s[76:79]", "s[0:1]", 88)
    a.op("s_load_dwordx2", "s[80:81]", "s[0:1]", 104)
    a.op("s_load_dwordx2", "s[82:83]", "s[0:1]", 120)
    a.op("s_and_b32", "s3", "s2", 7)
    a.op("s_lshl_b32", "s3", "s3", 5)
    a.op("s_lshr_b32", "s4", "s2", 3)
    a.op("s_add_u32", "s3", "s3", "s4")
    if os.environ.get("IDMAP"): a.op("s_mov_b32", "s3", "s2")
    a.op("v_lshrrev_b32", "v1", 6, "v0")
    a.op("v_readfirstlane_b32", "s4", "v1")
    a.op("v_and_b32", "v1", 63, "v0")
    a.op("s_lshl_b32", "s5", "s3", 3)
    a.waitcnt(lgkm=0)
    stamp(a)
    srd(a, 8, 64, 4 << 20)
    srd(a, 12, 68, 4 << 20)
    srd(a, 16, 70, 4 << 20)
    srd(a, 20, 72, 4 << 20)
    srd(a, 24, 76, 4 << 20)
    srd(a, 28, 80, 8 << 20)
    srd(a, 32, 82, 8 << 20)
    a.op("s_add_u32", "s66", "s66", "s5"); a.op("s_addc_u32", "s67", "s67", 0)
    a.op("s_add_u32", "s78", "s78", "s5"); a.op("s_addc_u32", "s79", "s79", 0)
    a.op("s_lshl_b32", "s6", "s3", 5)
    a.op("s_add_u32", "s74", "s74", "s6"); a.op("s_addc_u32", "s75", "s75", 0)
    a.op("s_load_dwordx2", "s[84:85]", "s[66:67]", 0)
    a.op("s_load_dwordx2", "s[86:87]", "s[78:79]", 0)
    a.op("s_load_dwordx8", "s[88:95]", "s[74:75]", 0)
    a.op("v_lshlrev_b32", "v2", 13, "v0")
    a.op("v_add_u32", "v2", "s5", "v2")
    a.op("v_add_u32", "v3", 4096, "v2")
    a.op("v_subrev_u32", "v4", 6144, "v2")
    a.op("v_subrev_u32", "v5", 2048, "v2")
    def rowloads(dst, s):
        a.op("buffer_load_dwordx2", vr(dst, 2), "v2", sr(s, 4), 0, "offen")
        a.op("buffer_load_dwordx2", vr(dst + 2, 2), "v2", sr(s, 4), 0, "offen", "offset:2048")
        a.op("buffer_load_dwordx2", vr(dst + 4, 2), "v3", sr(s, 4), 0, "offen")
        a.op("buffer_load_dwordx2", vr(dst + 6, 2), "v3", sr(s, 4), 0, "offen", "offset:2048")
    a.op("buffer_load_dwordx2", vr(18, 2), "v4", "s[16:19]", 0, "offen")
    a.op("buffer_load_dwordx2", vr(20, 2), "v4", "s[16:19]", 0, "offen", "offset:2048")
    a.op("buffer_load_dwordx2", vr(22, 2), "v5", "s[16:19]", 0, "offen")
    rowloads(24, 16)
    rowloads(32, 20)
    rowloads(10, 8)
    a.op("s_and_b32", "s7", "s4", 3)
    a.op("s_lshl_b32", "s36", "s3", 2)
    a.op("s_add_u32", "s7", "s7", "s36")
    a.op("s_lshl_b32", "s7", "s7", 12)
    a.op("v_lshlrev_b32", "v6", 4, "v1")
    a.op("v_add_u32", "v6", "s7", "v6")
    a.op("s_mov_b32", "s37", hex(4 << 20))
    a.op("s_cmp_ge_u32", "s4", 4)
    a.branch("s_cbranch_scc1", "L_fb")
    for it in range(4):
        a.op("buffer_load_dwordx4", vr(48 + 4 * it, 4), "v6", "s[32:35]", 0, "offen", "offset:%d" % (1024 * it))
    for it in range(4):
        a.op("buffer_load_dwordx4", vr(64 + 4 * it, 4), "v6", "s[32:35]", "s37", "offen", "offset:%d" % (1024 * it))
    a.branch("s_branch", "L_fd")
    a.label("L_fb")
    for it in range(4):
        a.op("buffer_load_dwordx4", vr(48 + 4 * it, 4), "v6", "s[24:27]", 0, "offen", "offset:%d" % (1024 * it))
    a.label("L_fd")
    rowloads(40, 12)
    a.op("s_mul_i32", "s38", "s4", CPW)
    a.op("s_mul_i32", "s39", "s4", MSTR)
    a.op("s_add_u32", "s39", "s39", MB)
    a.op("s_lshl_b32", "s40", "s4", 13)
    a.op("s_add_u32", "s41", "s4", 4)
    a.op("s_lshl_b32", "s41", "s41", 12)
    a.op("s_cmp_ge_u32", "s4", 4)
    a.op("s_cselect_b32", "s40", "s41", "s40")
    a.op("s_add_u32", "s40", "s40", HB)
    a.op("v_lshrrev_b32", "v7", 4, "v0")
    a.op("v_mul_u32_u24", "v7", MSTR, "v7")
    a.op("v_and_b32", "v8", 15, "v0")
    a.op("v_lshl_add_u32", "v7", "v8", 2, "v7")
    a.op("v_add_u32", "v7", MB, "v7")
    a.op("v_mov_b32", "v8", 0)
    a.op("v_cmp_gt_u32", "vcc", 128, "v0")
    a.op("s_and_saveexec_b64", "s[42:43]", "vcc")
    a.op("ds_write_b32", "v7", "v8")
    a.op("s_mov_b64", "exec", "s[42:43]")
    a.waitcnt(lgkm=0)
    for c in range(4):
        for tau in range(4):
            src = 88 + 2 * c + (tau >> 1)
            if tau & 1: a.op("s_and_b32", sr(44 + 4 * c + tau), sr(src), "0xffff0000")
            else: a.op("s_lshl_b32", sr(44 + 4 * c + tau), sr(src), 16)
    for c in range(4):
        for (dst, src) in ((60, 84), (96, 86)):
            s = src + (c >> 1)
            if c & 1: a.op("s_and_b32", sr(dst + c), sr(s), "0xffff0000")
            else: a.op("s_lshl_b32", sr(dst + c), sr(s), 16)
    a.op("s_mov_b32", "s100", "0x05040100")
    a.op("s_mov_b32", "s101", "0x07060302")
    a.waitcnt(vm=16)
    a.waitcnt(vm=12)
    stamp(a)
    for row in range(7):
        for h in range(2):
            src = 18 + 2 * row + h
            a.op("v_lshlrev_b32", vr(80 + 4 * row + 2 * h), 16, vr(src))
            a.op("v_and_b32", vr(80 + 4 * row + 2 * h + 1), "0xffff0000", vr(src))
    for r in range(4):
        for h in range(2):
            c0, c1 = 2 * h, 2 * h + 1
            accA, accB, pA, pB, pk = 120, 121, 122, 123, 124
            for ti, tau in enumerate((3, 2, 1, 0)):
                krow = r + 3 - tau
                a.op("v_mul_f32", vr(pA), sr(44 + 4 * c0 + tau), vr(80 + 4 * krow + c0))
                a.op("v_mul_f32", vr(pB), sr(44 + 4 * c1 + tau), vr(80 + 4 * krow + c1))
                a.op("v_cvt_pk_bf16_f32", vr(pk), vr(pA), vr(pB))
                if ti == 0:
                    a.op("v_lshlrev_b32", vr(accA), 16, vr(pk))
                    a.op("v_and_b32", vr(accB), "0xffff0000", vr(pk))
                else:
                    a.op("v_lshlrev_b32", vr(pA), 16, vr(pk))
                    a.op("v_and_b32", vr(pB), "0xffff0000", vr(pk))
                    a.op("v_add_f32", vr(pA), vr(accA), vr(pA))
                    a.op("v_add_f32", vr(pB), vr(accB), vr(pB))
                    a.op("v_cvt_pk_bf16_f32", vr(pk), vr(pA), vr(pB))
                    a.op("v_lshlrev_b32", vr(accA), 16, vr(pk))
                    a.op("v_and_b32", vr(accB), "0xffff0000", vr(pk))
            vsrc = 32 + 2 * r + h
            a.op("v_lshlrev_b32", vr(pA), 16, vr(vsrc))
            a.op("v_and_b32", vr(pB), "0xffff0000", vr(vsrc))
            a.op("v_mul_f32", vr(pA), vr(accA), vr(pA))
            a.op("v_mul_f32", vr(pB), vr(accB), vr(pB))
            a.op("v_cvt_pk_bf16_f32", vr(110 + 2 * r + h), vr(pA), vr(pB))
    a.op("v_lshlrev_b32", "v7", 3, "v0")
    a.op("v_add_u32", "v7", MB + 64, "v7")
    def scatter(base, chbase):
        for c in range(4):
            h = c >> 1; sel = "s101" if (c & 1) else "s100"
            a.op("v_perm_b32", "v120", vr(base + 2 + h), vr(base + 0 + h), sel)
            a.op("v_perm_b32", "v121", vr(base + 6 + h), vr(base + 4 + h), sel)
            a.op("ds_write_b64", "v7", "v[120:121]", "offset:%d" % ((chbase + c) * MSTR))
    scatter(110, 4)
    a.waitcnt(vm=4)
    stamp(a)
    scatter(10, 0)
    a.op("v_and_b32", "v8", 1, "v1")
    a.op("v_lshlrev_b32", "v8", 1, "v8")
    a.op("v_lshrrev_b32", "v9", 4, "v1")
    a.op("v_lshrrev_b32", "v120", 1, "v1")
    a.op("v_xor_b32", "v9", "v9", "v120")
    a.op("v_and_b32", "v9", 1, "v9")
    a.op("v_add_u32", "v8", "v8", "v9")
    a.op("v_lshlrev_b32", "v8", 4, "v8")
    a.op("v_lshrrev_b32", "v9", 2, "v1")
    a.op("v_lshl_add_u32", "v8", "v9", 6, "v8")
    a.op("v_add_u32", "v8", "s40", "v8")
    for it in range(4):
        a.op("ds_write_b128", "v8", vr(48 + 4 * it, 4), "offset:%d" % (1024 * it))
    a.op("s_cmp_ge_u32", "s4", 4)
    a.branch("s_cbranch_scc1", "L_nolo")
    for it in range(4):
        a.op("ds_write_b128", "v8", vr(64 + 4 * it, 4), "offset:%d" % (4096 + 1024 * it))
    a.label("L_nolo")
    a.op("v_and_b32", "v120", 15, "v1")
    a.op("v_lshrrev_b32", "v121", 4, "v1")
    a.op("v_lshlrev_b32", "v122", 3, "v121")
    a.op("v_sub_u32", "v122", "v122", "v120")
    a.op("v_add_u32", "v122", 1023, "v122")
    a.op("v_lshrrev_b32", "v123", 2, "v122")
    a.op("v_lshlrev_b32", "v123", 5, "v123")
    a.op("v_and_b32", "v122", 3, "v122")
    a.op("v_lshl_add_u32", "v123", "v122", 3, "v123")
    a.op("s_sub_u32", "s41", "s38", 8 * (32 * 15 + 528))
    a.op("v_add_u32", "v8", "s41", "v123")
    a.op("v_and_b32", "v122", 1, "v121")
    a.op("v_lshlrev_b32", "v122", 1, "v122")
    a.op("v_lshrrev_b32", "v123", 1, "v121")
    a.op("s_sub_u32", "s41", "s40", 960)
    for m in range(8):
        a.op("v_add_u32", "v124", 16 - m, "v120")
        a.op("v_lshrrev_b32", "v124", 2, "v124")
        a.op("v_xor_b32", "v124", "v124", "v123")
        a.op("v_and_b32", "v124", 1, "v124")
        a.op("v_add_u32", "v124", "v124", "v122")
        a.op("v_lshlrev_b32", "v124", 4, "v124")
        a.op("v_lshl_add_u32", "v124", "v120", 6, "v124")
        a.op("v_add_u32", vr(130 + m), "s41", "v124")
    a.op("v_lshlrev_b32", "v9", 6, "v120")
    a.op("v_lshl_add_u32", "v9", "v121", 3, "v9")
    a.op("s_add_u32", "s41", "s39", 64)
    a.op("v_add_u32", "v9", "s41", "v9")
    a.op("v_lshlrev_b32", "v124", 3, "v1")
    a.op("s_add_u32", "s41", "s39", 64 + 2032 - 512 * 4)
    a.op("v_sub_u32", "v138", "s41", "v124")
    a.op("v_lshlrev_b32", "v139", 5, "v1")
    a.op("v_add_u32", "v139", "s38", "v139")
    a.op("v_mov_b32", "v140", "0xffff")
    a.op("v_mov_b32", "v129", "v120")
    a.waitcnt(lgkm=0)
    stamp(a)
    a.op("s_barrier")
    stamp(a)

    ACC = 144
    TA = 176
    TBH = 208
    def tb(buf, f, d):
        if buf == 0: return TBH + 16 * f + 4 * d
        return 48 + 16 * f + 4 * d
    def ta(buf, jj, rb): return TA + 16 * buf + 8 * jj + 4 * rb

    def build_copies(p):
        for it in range(5):
            off = 2048 * p + 512 * (4 - it)
            a.op("ds_read_b64", "v[120:121]", "v138", "offset:%d" % off)
            a.op("ds_read_b64", "v[122:123]", "v138", "offset:%d" % (off + 8))
            a.waitcnt(lgkm=0)
            N0, N1, N2, N3 = 120, 121, 122, 123
            Q = 240
            a.op("v_alignbit_b32", vr(Q + 0), vr(N3), vr(N3), 16)
            a.op("v_alignbit_b32", vr(Q + 1), vr(N2), vr(N2), 16)
            a.op("v_bfi_b32", vr(Q + 2), "v140", vr(N3), vr(N2))
            a.op("v_bfi_b32", vr(Q + 3), "v140", vr(N2), vr(N1))
            a.op("v_mov_b32", vr(Q + 4), vr(Q + 1))
            a.op("v_alignbit_b32", vr(Q + 5), vr(N1), vr(N1), 16)
            a.op("v_mov_b32", vr(Q + 6), vr(Q + 3))
            a.op("v_bfi_b32", vr(Q + 7), "v140", vr(N1), vr(N0))
            if it == 4:
                a.op("v_cmp_gt_u32", "vcc", 9, "v1")
                a.op("s_and_saveexec_b64", "s[42:43]", "vcc")
            a.op("ds_write_b128", "v139", vr(Q, 4), "offset:%d" % (2048 * it))
            a.op("ds_write_b128", "v139", vr(Q + 4, 4), "offset:%d" % (2048 * it + 16))
            if it == 4:
                a.op("s_mov_b64", "exec", "s[42:43]")
        a.waitcnt(lgkm=0)

    def conv(nf):
        for i in range(32):
            a.op("v_mov_b32", vr(ACC + i), 0)
        steps = [(p, d0) for p in range(2) for d0 in range(16)]
        def issue(p, d0, buf):
            nd = 4 if p == 0 else 2
            for jj in range(2):
                for rb in range(2):
                    off = 256 * (15 - d0) + 4096 * (1 - jj) + 128 * (1 - rb)
                    t = ta(buf, jj, rb)
                    a.op("ds_read_b64", vr(t, 2), "v8", "offset:%d" % off)
                    a.op("ds_read_b64", vr(t + 2, 2), "v8", "offset:%d" % (off + 32))
            for f in range(nf):
                for d in range(nd):
                    off = 64 * (15 - d0) + 1024 * d + 4096 * f
                    a.op("ds_read_b128", vr(tb(buf, f, d), 4), vr(130 + (d0 & 7)), "offset:%d" % off)
        for si, (p, d0) in enumerate(steps):
            buf = si & 1
            if d0 == 0:
                stamp(a)
                build_copies(p)
                stamp(a)
                issue(p, d0, buf)
            a.waitcnt(lgkm=0)
            if d0 < 15:
                issue(p, d0 + 1, buf ^ 1)
            if d0 > 0:
                a.op("v_cmp_le_u32", "vcc", d0, "v129")
                for f in range(nf):
                    for k in range(4):
                        r = tb(buf, f, 0) + k
                        a.op("v_cndmask_b32", vr(r), 0, vr(r), "vcc")
            for jj in range(2):
                j = 2 * p + jj
                for c in range(j, 4):
                    d = c - j
                    for f in range(nf):
                        for rb in range(2):
                            acc = ACC + 8 * c + 4 * rb
                            a.op("v_mfma_f32_16x16x32_bf16", vr(acc, 4), vr(ta(buf, jj, rb), 4), vr(tb(buf, f, d), 4), vr(acc, 4))
        for c in range(4):
            for rb in range(2):
                acc = ACC + 8 * c + 4 * rb
                a.op("v_cvt_pk_bf16_f32", "v120", vr(acc), vr(acc + 1))
                a.op("v_cvt_pk_bf16_f32", "v121", vr(acc + 2), vr(acc + 3))
                a.op("ds_write_b64", "v9", "v[120:121]", "offset:%d" % (1024 * c + 32 * rb))

    a.op("s_cmp_ge_u32", "s4", 4)
    a.branch("s_cbranch_scc1", "L_convB")
    conv(2)
    a.branch("s_branch", "L_convDone")
    a.label("L_convB")
    if STAMP: stamp_n[0] = 5
    conv(1)
    a.label("L_convDone")
    if STAMP: stamp_n[0] = 9
    stamp(a)
    a.waitcnt(vm=0, lgkm=0)
    a.op("s_barrier")
    stamp(a)
    for ch in range(8):
        a.op("ds_read_b64", vr(48 + 2 * ch, 2), "v7", "offset:%d" % (ch * MSTR))
    a.op("v_lshlrev_b32", "v2", 14, "v0")
    a.op("v_add_u32", "v2", "s5", "v2")
    for r in range(4):
        a.op("s_mov_b32", sr(36 + r), 4096 * r)
    a.waitcnt(lgkm=0)
    def unp(dst, src, hi):
        if hi: a.op("v_and_b32", vr(dst), "0xffff0000", vr(src))
        else: a.op("v_lshlrev_b32", vr(dst), 16, vr(src))
    for r in range(4):
        for part in range(2):
            for h in range(2):
                c0, c1 = 2 * h, 2 * h + 1
                xsrc = (10 if part == 0 else 110) + 2 * r + h
                dsk = 60 if part == 0 else 96
                unp(120, xsrc, 0); unp(121, xsrc, 1)
                a.op("v_mul_f32", "v120", sr(dsk + c0), "v120")
                a.op("v_mul_f32", "v121", sr(dsk + c1), "v121")
                a.op("v_cvt_pk_bf16_f32", "v122", "v120", "v121")
                unp(120, 122, 0); unp(121, 122, 1)
                unp(123, 48 + 2 * (4 * part + c0) + (r >> 1), r & 1)
                unp(124, 48 + 2 * (4 * part + c1) + (r >> 1), r & 1)
                a.op("v_add_f32", "v120", "v123", "v120")
                a.op("v_add_f32", "v121", "v124", "v121")
                dst = 70 + h
                a.op("v_cvt_pk_bf16_f32", vr(dst), "v120", "v121")
                if part == 1:
                    unp(120, dst, 0); unp(121, dst, 1)
                    unp(123, 40 + 2 * r + h, 0); unp(124, 40 + 2 * r + h, 1)
                    a.op("v_mul_f32", "v120", "v123", "v120")
                    a.op("v_mul_f32", "v121", "v124", "v121")
                    a.op("v_cvt_pk_bf16_f32", vr(dst), "v120", "v121")
            if part == 0:
                a.op("buffer_store_dwordx2", "v[70:71]", "v2", "s[28:31]", sr(36 + r), "offen")
            else:
                a.op("buffer_store_dwordx2", "v[70:71]", "v2", "s[28:31]", sr(36 + r), "offen", "offset:2048")
            a.nop(1)
    if STAMP:
        a.waitcnt(vm=0)
        stamp(a)
        a.op("s_cmp_lg_u32", "s2", int(STAMP))
        a.branch("s_cbranch_scc1", "L_k2_end")
        a.op("s_load_dwordx2", "s[64:65]", "s[0:1]", 112)
        a.waitcnt(lgkm=0)
        srd(a, 8, 64, 256)
        a.op("v_lshlrev_b32", "v2", 2, "v1")
        a.op("s_and_b32", "s5", "s4", 3)
        a.op("s_lshr_b32", "s6", "s4", 2)
        a.op("s_cmp_ge_u32", "s5", 2)
        a.branch("s_cbranch_scc1", "L_k2_end")
        a.op("s_lshl_b32", "s5", "s5", 1)
        a.op("s_add_u32", "s5", "s5", "s6")
        a.op("s_lshl_b32", "s5", "s5", 6)
        a.op("v_add_u32", "v2", "s5", "v2")
        a.op("v_cmp_gt_u32", "vcc", 16, "v1")
        a.op("s_and_saveexec_b64", "s[42:43]", "vcc")
        a.op("buffer_store_dword", "v251", "v2", "s[8:11]", 0, "offen")
    a.label("L_k2_end")
    a.op("s_endpgm")

def kd(name, vgpr, sgpr=102):
    acc = (vgpr + 3) // 4 * 4
    return f""".amdhsa_kernel {name}
  .amdhsa_next_free_vgpr {vgpr}
  .amdhsa_next_free_sgpr {sgpr}
  .amdhsa_accum_offset {acc}
  .amdhsa_group_segment_fixed_size 0
  .amdhsa_kernarg_size 128
  .amdhsa_user_sgpr_count 2
  .amdhsa_user_sgpr_kernarg_segment_ptr 1
  .amdhsa_system_sgpr_workgroup_id_x 1
.end_amdhsa_kernel
"""

def main(out):
    a = Asm()
    gen_k1(a)
    gen_k2(a)
    txt = HEADER
    txt += "; @launch kernel=kgen_kernel grid=(256,1,1) block=(256,1,1) lds=%d\n" % (4 * 64 * 544)
    txt += "; @launch kernel=conv_kernel grid=(256,1,1) block=(512,1,1) lds=%d\n" % LDS_K2
    txt += '.amdgcn_target "amdgcn-amd-amdhsa--gfx950"\n.text\n'
    txt += a.text()
    txt += '.section .rodata,"a"\n.p2align 6\n' + kd("kgen_kernel", 128) + ".p2align 6\n" + kd("conv_kernel", 256 if STAMP else 248)
    open(out, "w").write(txt)
    print("instructions:", a.n_ins, "bytes:", len(txt))
```

```python
import struct, sys, os
import numpy as np
from asmgen import Asm, vr, sr
from gen1_lib import srd, hexf, HEADER, kd, accurate_exp, bf16_round, L2E_HI, L2E_LO, LN2, I2PI_HI, I2PI_LO

STAMP = os.environ.get("STAMP")
stamp_n = [0]
def stamp(a):
    if not STAMP: return
    i = stamp_n[0]; stamp_n[0] += 1
    a.op("s_memtime", "s[42:43]")
    a.waitcnt(lgkm=0)
    a.op("v_writelane_b32", vr(251), "s42", i)

KN = "concat_heads__ssm_conv_s4d__ssm_conv_h3__prompt_kernel"
TS = 264
ABLK = 24224
BBLK = 16736
PAIR = ABLK + BBLK
O_CP, O_MS, O_HF = 0, 8480, 12640
CNT = 20832
LDS_K2 = 4 * PAIR
RS = 544
O_E, O_G = 0, 16 * RS
lblc = [0]
def newlbl(p="L"):
    lblc[0] += 1
    return "%s_%d" % (p, lblc[0])

rt_n = [0]
def rstamp(a):
    if not STAMP: return
    i = rt_n[0]; rt_n[0] += 1
    a.op("s_memrealtime", "s[42:43]")
    a.waitcnt(lgkm=0)
    a.op("v_writelane_b32", vr(252), "s42", i)

def gen(a):
    a.raw(".p2align 8")
    a.raw(".globl %s" % KN)
    a.raw(".type %s,@function" % KN)
    a.raw(KN + ":")
    a.op("s_cmp_ge_u32", "s2", 256)
    a.branch("s_cbranch_scc1", "L_end")
    a.op("s_load_dwordx8", "s[44:51]", "s[0:1]", 8)
    a.op("s_load_dwordx4", "s[64:67]", "s[0:1]", 40)
    a.op("s_load_dwordx8", "s[68:75]", "s[0:1]", 56)
    a.op("s_load_dwordx2", "s[98:99]", "s[0:1]", 0)
    a.op("s_load_dwordx4", "s[76:79]", "s[0:1]", 88)
    a.op("s_load_dwordx4", "s[80:83]", "s[0:1]", 104)
    a.op("s_load_dwordx2", "s[54:55]", "s[0:1]", 120)
    a.op("s_and_b32", "s3", "s2", 7)
    a.op("s_lshl_b32", "s3", "s3", 5)
    a.op("s_lshr_b32", "s4", "s2", 3)
    a.op("s_add_u32", "s3", "s3", "s4")
    a.op("v_lshrrev_b32", "v1", 6, "v0")
    a.op("v_readfirstlane_b32", "s4", "v1")
    a.op("v_and_b32", "v1", 63, "v0")
    a.op("s_lshl_b32", "s5", "s3", 3)
    a.op("s_and_b32", "s7", "s4", 3)
    a.op("s_lshr_b32", "s6", "s4", 2)
    a.op("s_mul_i32", "s38", "s7", PAIR)
    a.op("s_mul_i32", "s39", "s6", ABLK)
    a.op("s_add_u32", "s38", "s38", "s39")
    a.op("s_lshl_b32", "s36", "s3", 2)
    a.op("s_add_u32", "s7", "s7", "s36")
    a.op("v_mov_b32", "v120", CNT)
    a.op("v_mov_b32", "v122", 0)
    a.op("v_mov_b32", "v123", 0)
    a.op("v_cmp_eq_u32", "vcc", 0, "v0")
    a.op("s_and_saveexec_b64", "s[42:43]", "vcc")
    a.op("ds_write_b64", "v120", "v[122:123]")
    a.op("ds_write_b64", "v120", "v[122:123]", "offset:8")
    a.op("s_mov_b64", "exec", "s[42:43]")
    a.waitcnt(lgkm=0)
    a.op("s_barrier")
    stamp(a)
    rstamp(a)
    a.op("s_lshr_b32", "s36", "s7", 1)
    a.op("s_lshl_b32", "s36", "s36", 2)
    a.op("s_add_u32", "s64", "s64", "s36"); a.op("s_addc_u32", "s65", "s65", 0)
    a.op("s_load_dword", "s87", "s[64:65]", 0)
    a.op("s_cmp_ge_u32", "s4", 4)
    a.op("s_cselect_b32", "s66", "s78", "s66")
    a.op("s_cselect_b32", "s67", "s79", "s67")
    a.op("s_add_u32", "s66", "s66", "s36"); a.op("s_addc_u32", "s67", "s67", 0)
    a.op("s_load_dword", "s84", "s[66:67]", 0)
    a.op("s_lshl_b32", "s52", "s7", 12)
    a.op("v_lshlrev_b32", "v6", 4, "v1")
    a.op("v_add_u32", "v6", "s52", "v6")
    a.op("s_lshl_b32", "s53", "s6", 22)
    a.op("s_cmp_ge_u32", "s4", 4)
    a.branch("s_cbranch_scc1", "L_Bloads")
    srd(a, 8, 44, 262144); srd(a, 16, 46, 262144); srd(a, 20, 48, 262144); srd(a, 56, 50, 262144)
    a.op("s_lshl_b32", "s41", "s7", 8)
    a.op("v_lshlrev_b32", "v28", 1, "v1")
    a.op("v_add_u32", "v28", "s41", "v28")
    PR = 30
    for k, s in enumerate((8, 16, 20, 56)):
        a.op("buffer_load_ushort", vr(PR + k), "v28", sr(s, 4), 0, "offen")
    for k, s in enumerate((8, 16, 20, 56)):
        a.op("buffer_load_ushort", vr(112 + k), "v28", sr(s, 4), 0, "offen", "offset:128")
    a.branch("s_branch", "L_common")
    a.label("L_Bloads")
    a.op("s_and_b32", "s91", "s2", 15)
    a.op("s_lshr_b32", "s97", "s2", 4)
    a.op("s_lshl_b32", "s41", "s97", 18)
    a.op("s_lshl_b32", "s36", "s91", 7)
    a.op("s_add_u32", "s41", "s41", "s36")
    a.op("v_and_b32", "v4", 7, "v0")
    a.op("v_bfe_u32", "v5", "v0", 3, 5)
    a.op("v_lshlrev_b32", "v120", 13, "v5")
    a.op("v_lshl_add_u32", "v120", "v4", 4, "v120")
    a.op("v_add_u32", "v120", "s41", "v120")
    a.op("v_add_u32", "v121", 4096, "v120")
    a.op("v_subrev_u32", "v122", 6144, "v120")
    a.op("v_subrev_u32", "v123", 2048, "v120")
    a.op("s_lshl_b32", "s36", "s91", 9)
    a.op("v_lshlrev_b32", "v124", 6, "v4")
    a.op("v_add_u32", "v124", "s36", "v124")
    TU, TK, TV, TW = 144, 160, 188, 204
    def rl(dst):
        a.op("buffer_load_dwordx4", vr(dst, 4), "v120", "s[12:15]", 0, "offen")
        a.op("buffer_load_dwordx4", vr(dst + 4, 4), "v120", "s[12:15]", 0, "offen", "offset:2048")
        a.op("buffer_load_dwordx4", vr(dst + 8, 4), "v121", "s[12:15]", 0, "offen")
        a.op("buffer_load_dwordx4", vr(dst + 12, 4), "v121", "s[12:15]", 0, "offen", "offset:2048")
    srd(a, 12, 74, 8192)
    for i in range(4):
        a.op("buffer_load_dwordx4", vr(TW + 4 * i, 4), "v124", "s[12:15]", 0, "offen", "offset:%d" % (16 * i))
    srd(a, 12, 70, 4 << 20)
    a.op("buffer_load_dwordx4", vr(TK, 4), "v122", "s[12:15]", 0, "offen")
    a.op("buffer_load_dwordx4", vr(TK + 4, 4), "v122", "s[12:15]", 0, "offen", "offset:2048")
    a.op("buffer_load_dwordx4", vr(TK + 8, 4), "v123", "s[12:15]", 0, "offen")
    rl(TK + 12)
    srd(a, 12, 72, 4 << 20)
    rl(TV)
    srd(a, 12, 98, 4 << 20)
    rl(TU)
    srd(a, 24, 76, 4 << 20)
    for it in range(4):
        a.op("buffer_load_dwordx4", vr(96 + 4 * it, 4), "v6", "s[24:27]", 0, "offen", "offset:%d" % (1024 * it))
    a.label("L_common")
    srd(a, 32, 54, 8 << 20)
    srd(a, 12, 68, 4 << 20)
    srd(a, 28, 80, 8 << 20)
    srd(a, 92, 82, 256)
    a.op("s_add_u32", "s39", "s38", O_MS)
    a.op("s_add_u32", "s40", "s38", O_HF)
    a.op("s_mov_b32", "s100", "0x05040100")
    a.op("s_mov_b32", "s101", "0x07060302")
    a.op("v_and_b32", "v8", 1, "v1")
    a.op("v_lshlrev_b32", "v8", 1, "v8")
    a.op("v_lshrrev_b32", "v9", 4, "v1")
    a.op("v_lshrrev_b32", "v126", 1, "v1")
    a.op("v_xor_b32", "v9", "v9", "v126")
    a.op("v_and_b32", "v9", 1, "v9")
    a.op("v_add_u32", "v8", "v8", "v9")
    a.op("v_lshlrev_b32", "v8", 4, "v8")
    a.op("v_lshrrev_b32", "v9", 2, "v1")
    a.op("v_lshl_add_u32", "v8", "v9", 6, "v8")
    a.op("v_add_u32", "v26", "s40", "v8")
    a.op("v_lshlrev_b32", "v27", 4, "v1")
    a.op("s_add_u32", "s41", "s39", 64)
    a.op("v_add_u32", "v27", "s41", "v27")
    a.op("v_and_b32", "v129", 15, "v1")
    a.op("v_lshrrev_b32", "v125", 4, "v1")
    a.op("v_lshlrev_b32", "v126", 3, "v125")
    a.op("v_sub_u32", "v126", "v126", "v129")
    a.op("v_add_u32", "v126", 1023, "v126")
    a.op("v_lshrrev_b32", "v127", 2, "v126")
    a.op("v_lshlrev_b32", "v127", 5, "v127")
    a.op("v_and_b32", "v126", 3, "v126")
    a.op("v_lshl_add_u32", "v127", "v126", 3, "v127")
    a.op("s_sub_u32", "s41", "s38", 8 * (32 + 528))
    a.op("v_add_u32", "v130", "s41", "v127")
    a.op("v_lshrrev_b32", "v131", 1, "v125")
    a.op("v_and_b32", "v126", 1, "v125")
    a.op("v_lshlrev_b32", "v126", 5, "v126")
    a.op("v_lshrrev_b32", "v127", 2, "v129")
    a.op("v_xor_b32", "v127", "v127", "v131")
    a.op("v_and_b32", "v127", 1, "v127")
    a.op("v_lshl_add_u32", "v126", "v127", 4, "v126")
    a.op("v_lshl_add_u32", "v126", "v129", 6, "v126")
    a.op("v_add_u32", "v132", "s40", "v126")
    a.op("v_lshlrev_b32", "v9", 6, "v129")
    a.op("v_lshl_add_u32", "v9", "v125", 3, "v9")
    a.op("s_add_u32", "s41", "s39", 64)
    a.op("v_add_u32", "v9", "s41", "v9")
    a.op("v_lshlrev_b32", "v126", 3, "v1")
    a.op("s_add_u32", "s41", "s39", 64 + 2032)
    a.op("v_sub_u32", "v138", "s41", "v126")
    a.op("v_lshlrev_b32", "v139", 5, "v1")
    a.op("v_add_u32", "v139", "s38", "v139")
    a.op("v_mov_b32", "v140", "0xffff")
    a.op("v_and_b32", "v142", 255, "v0")
    a.op("v_lshlrev_b32", "v7", 4, "v142")
    a.op("s_mul_i32", "s41", "s6", ABLK)
    a.op("s_add_u32", "s41", "s41", O_MS + 64)
    a.op("v_add_u32", "v7", "s41", "v7")
    a.op("v_add_u32", "v141", 2 * PAIR, "v7")
    a.op("v_lshlrev_b32", "v2", 14, "v142")
    a.op("v_add_u32", "v2", "s5", "v2")
    a.op("v_lshlrev_b32", "v3", 15, "v142")
    a.op("s_lshl_b32", "s41", "s6", 11)
    a.op("s_add_u32", "s41", "s41", "s5")
    a.op("v_add_u32", "v3", "s41", "v3")
    for r in range(8):
        a.op("s_mov_b32", sr(68 + r), 4096 * r)
    a.waitcnt(lgkm=0)
    a.op("s_lshl_b32", "s85", "s84", 16)
    a.op("s_and_b32", "s86", "s84", "0xffff0000")
    a.op("s_lshl_b32", "s88", "s87", 16)
    a.op("s_and_b32", "s89", "s87", "0xffff0000")
    a.op("s_bitcmp1_b32", "s7", 0)
    a.op("s_cselect_b32", "s85", "s86", "s85")
    a.op("s_cselect_b32", "s88", "s89", "s88")

    ACC = 144
    TA = 176
    TBH = 208
    def tb(buf, f, d):
        if buf == 0: return TBH + 16 * f + 4 * d
        return 48 + 16 * f + 4 * d
    def ta(buf, jj, rb): return TA + 16 * buf + 8 * jj + 4 * rb
    KACC = 144

    def emit_interleaved(streams):
        n = max(len(s) for s in streams)
        for i in range(n):
            for s in streams:
                if i < len(s): a.op(*s[i])

    def lds_sync(off, target):
        a.op("v_mov_b32", "v120", CNT + off)
        a.op("v_mov_b32", "v121", 1)
        a.op("v_cmp_eq_u32", "vcc", 0, "v1")
        a.op("s_and_saveexec_b64", "s[42:43]", "vcc")
        a.op("ds_add_u32", "v120", "v121")
        a.op("s_mov_b64", "exec", "s[42:43]")
        L = newlbl("Lsp")
        a.label(L)
        a.op("ds_read_b32", "v121", "v120")
        a.waitcnt(lgkm=0)
        a.op("v_readfirstlane_b32", "s96", "v121")
        a.op("s_cmp_lt_u32", "s96", target)
        a.branch("s_cbranch_scc1", L)

    def wait_flag():
        a.op("v_mov_b32", "v122", CNT + 8)
        L = newlbl("Lxw")
        a.label(L)
        a.op("ds_read_b32", "v120", "v122")
        a.waitcnt(lgkm=0)
        a.op("v_readfirstlane_b32", "s96", "v120")
        a.op("s_cmp_eq_u32", "s96", 0)
        a.branch("s_cbranch_scc0", L + "_ok")
        a.op("s_sleep", 1)
        a.branch("s_branch", L)
        a.label(L + "_ok")

    def x_loads():
        for it in range(4):
            a.op("buffer_load_dwordx4", vr(10 + 4 * it, 4), "v6", "s[32:35]", "s53", "offen", "offset:%d" % (1024 * it), "sc1")

    def zero_pad_and_master():
        a.op("v_lshlrev_b32", "v120", 2, "v1")
        a.op("v_add_u32", "v120", "s39", "v120")
        a.op("v_mov_b32", "v121", 0)
        a.op("v_cmp_gt_u32", "vcc", 16, "v1")
        a.op("s_and_saveexec_b64", "s[42:43]", "vcc")
        a.op("ds_write_b32", "v120", "v121")
        a.op("s_mov_b64", "exec", "s[42:43]")
        for it in range(4):
            a.op("ds_write_b128", "v27", vr(10 + 4 * it, 4), "offset:%d" % (1024 * it))

    def build_copies(p):
        a.op("v_add_u32", "v133", 2048 * p, "v138")
        a.op("v_mov_b32", "v134", "v139")
        a.op("v_mov_b32", "v135", "v1")
        a.op("s_mov_b32", "s96", 5)
        L = newlbl("Lcp")
        a.loop_label(L)
        a.op("ds_read_b64", "v[120:121]", "v133")
        a.op("ds_read_b64", "v[122:123]", "v133", "offset:8")
        a.op("v_cmp_gt_u32", "vcc", 263, "v135")
        a.op("v_subrev_u32", "v133", 512, "v133")
        a.op("v_add_u32", "v135", 64, "v135")
        a.waitcnt(lgkm=0)
        N0, N1, N2, N3 = 120, 121, 122, 123
        Q = 240
        a.op("v_alignbit_b32", vr(Q + 0), vr(N3), vr(N3), 16)
        a.op("v_alignbit_b32", vr(Q + 1), vr(N2), vr(N2), 16)
        a.op("v_bfi_b32", vr(Q + 2), "v140", vr(N3), vr(N2))
        a.op("v_bfi_b32", vr(Q + 3), "v140", vr(N2), vr(N1))
        a.op("v_mov_b32", vr(Q + 4), vr(Q + 1))
        a.op("v_alignbit_b32", vr(Q + 5), vr(N1), vr(N1), 16)
        a.op("v_mov_b32", vr(Q + 6), vr(Q + 3))
        a.op("v_bfi_b32", vr(Q + 7), "v140", vr(N1), vr(N0))
        a.op("s_and_saveexec_b64", "s[42:43]", "vcc")
        a.op("ds_write_b128", "v134", vr(Q, 4))
        a.op("ds_write_b128", "v134", vr(Q + 4, 4), "offset:16")
        a.op("s_mov_b64", "exec", "s[42:43]")
        a.op("v_add_u32", "v134", 2048, "v134")
        a.op("s_sub_u32", "s96", "s96", 1)
        a.op("s_cmp_lg_u32", "s96", 0)
        a.loop_branch("s_cbranch_scc1", L)
        a.waitcnt(lgkm=0)

    def kgen():
        a.op("s_mov_b32", "s60", hexf(L2E_HI)); a.op("s_mov_b32", "s61", hexf(L2E_LO)); a.op("s_mov_b32", "s62", hexf(LN2))
        a.op("s_mov_b32", "s63", hexf(I2PI_HI)); a.op("s_mov_b32", "s90", hexf(I2PI_LO))
        T0, T1, T2, T3 = 240, 241, 242, 243
        ZR, ZI, CP_ = 38, 39, 36
        DT = 29
        a.op("v_mov_b32", vr(T2), "s88")
        accurate_exp(a, DT, T2, T0, T1, 60, 61, 62)
        bf16_round(a, DT, DT)
        a.op("v_lshlrev_b32", "v246", 2, "v1")
        a.op("v_add_u32", "v246", "s38", "v246")
        a.op("v_mul_u32_u24", "v247", RS, "v129")
        a.op("v_lshrrev_b32", vr(T0), 4, "v1")
        a.op("v_lshlrev_b32", vr(T0), 4, vr(T0))
        a.op("v_add3_u32", "v247", "v247", vr(T0), "s38")
        for i in range(12):
            a.op("v_mov_b32", vr(KACC + i), 0)
        W1, W2, W4, W8 = 160, 162, 164, 166
        B1, B2, B4, B8 = 168, 170, 172, 174
        A1, A2, A3, A4, A8 = 176, 178, 180, 182, 184
        E2, E4, E8, BB2 = 186, 188, 190, 192
        ST = 194
        EFH, EFL, GF, GFL = 96, 196, 216, 10
        CH = [dict(CX=48 + 12 * k, CY=50 + 12 * k, TP=52 + 12 * k, HF=54 + 12 * k, T4=56 + 12 * k, T5=57 + 12 * k, VW=58 + 12 * k) for k in range(4)]
        def cmul_ops(d, x, y, tp):
            return [("v_pk_mul_f32", vr(tp, 2), vr(x, 2), vr(y, 2), "op_sel:[0,0]", "op_sel_hi:[0,1]"),
                    ("v_pk_fma_f32", vr(d, 2), vr(x, 2), vr(y, 2), vr(tp, 2), "op_sel:[1,1,0]", "op_sel_hi:[1,0,1]", "neg_lo:[1,0,0]", "neg_hi:[0,0,0]")]
        def wr_ops(c, src, neg):
            ni = "-" if neg else ""
            return [("v_cvt_pk_bf16_f32", vr(c["T4"]), vr(src), ni + vr(src + 1)),
                    ("v_lshlrev_b32", vr(c["HF"]), 16, vr(c["T4"])),
                    ("v_and_b32", vr(c["HF"] + 1), "0xffff0000", vr(c["T4"])),
                    ("v_pk_add_f32", vr(c["HF"], 2), vr(src, 2), vr(c["HF"], 2), "neg_lo:[0,1]", "neg_hi:[%d,1]" % (1 if neg else 0)),
                    ("v_cvt_pk_bf16_f32", vr(c["T5"]), vr(c["HF"]), vr(c["HF"] + 1)),
                    ("ds_write2_b32", vr(c["VW"]), vr(c["T4"]), vr(c["T5"]), "offset0:0", "offset1:64")]
        def cexp_ops(d, P, t):
            t0, t1, t2, t3 = t, t + 1, t + 2, t + 3
            return [("v_mul_f32", vr(t2), hexf(float(P)), vr(ZR)),
                    ("v_mul_f32", vr(t0), "s60", vr(t2)),
                    ("v_fma_f32", vr(t1), vr(t2), "s60", "-" + vr(t0)),
                    ("v_fma_f32", vr(t1), vr(t2), "s61", vr(t1)),
                    ("v_exp_f32", vr(t3), vr(t0)),
                    ("v_mul_f32", vr(t1), "s62", vr(t1)),
                    ("v_mul_f32", vr(t2), hexf(float(P)), vr(ZI)),
                    ("v_fma_f32", vr(t3), vr(t3), vr(t1), vr(t3)),
                    ("v_mul_f32", vr(t0), "s63", vr(t2)),
                    ("v_fma_f32", vr(t1), vr(t2), "s63", "-" + vr(t0)),
                    ("v_fma_f32", vr(t1), vr(t2), "s90", vr(t1)),
                    ("v_fract_f32", vr(t0), vr(t0)),
                    ("v_add_f32", vr(t0), vr(t0), vr(t1)),
                    ("v_cos_f32", vr(d), vr(t0)),
                    ("v_sin_f32", vr(d + 1), vr(t0)),
                    ("v_mul_f32", vr(d), vr(d), vr(t3)),
                    ("v_mul_f32", vr(d + 1), vr(d + 1), vr(t3))]
        def chains(specs, n, tab, neg):
            st = []
            for c, (x, y, step, row0, rs) in zip(CH, specs):
                if y is None: o = [("v_mov_b32", vr(c["CX"]), vr(x)), ("v_mov_b32", vr(c["CX"] + 1), vr(x + 1))]
                else: o = cmul_ops(c["CX"], x, y, c["TP"])
                o.append(("v_add_u32", vr(c["VW"]), tab + row0 * RS, "v246"))
                st.append(o)
            emit_interleaved(st)
            if n == 1:
                emit_interleaved([wr_ops(c, c["CX"], neg) for c, _ in zip(CH, specs)]); return
            if n > 2:
                a.op("s_mov_b32", "s96", n // 2)
                L = newlbl("Lch")
                a.loop_label(L)
            st = []
            for c, (x, y, step, row0, rs) in zip(CH, specs):
                o = cmul_ops(c["CY"], c["CX"], step, c["TP"]) + wr_ops(c, c["CX"], neg) + [("v_add_u32", vr(c["VW"]), rs * RS, vr(c["VW"]))]
                o += cmul_ops(c["CX"], c["CY"], step, c["TP"]) + wr_ops(c, c["CY"], neg) + [("v_add_u32", vr(c["VW"]), rs * RS, vr(c["VW"]))]
                st.append(o)
            emit_interleaved(st)
            if n > 2:
                a.op("s_sub_u32", "s96", "s96", 1)
                a.op("s_cmp_lg_u32", "s96", 0)
                a.loop_branch("s_cbranch_scc1", L)
        def do_tile(t, first):
            for ks in range(4):
                a.op("ds_read_b128", vr(GF + 4 * ks, 4), "v247", "offset:%d" % (O_G + 64 * ks))
                a.op("ds_read_b128", vr(GFL + 4 * ks, 4), "v247", "offset:%d" % (O_G + 256 + 64 * ks))
            if first:
                for ks in range(4):
                    a.op("ds_read_b128", vr(EFH + 4 * ks, 4), "v247", "offset:%d" % (O_E + 64 * ks))
                    a.op("ds_read_b128", vr(EFL + 4 * ks, 4), "v247", "offset:%d" % (O_E + 256 + 64 * ks))
            a.waitcnt(lgkm=0)
            acc = KACC + 4 * t
            for ks in range(4):
                a.op("v_mfma_f32_16x16x32_bf16", vr(acc, 4), vr(GFL + 4 * ks, 4), vr(EFH + 4 * ks, 4), vr(acc, 4))
                a.op("v_mfma_f32_16x16x32_bf16", vr(acc, 4), vr(GF + 4 * ks, 4), vr(EFL + 4 * ks, 4), vr(acc, 4))
                a.op("v_mfma_f32_16x16x32_bf16", vr(acc, 4), vr(GF + 4 * ks, 4), vr(EFH + 4 * ks, 4), vr(acc, 4))
        a.op("v_mov_b32", vr(ST), 1.0); a.op("v_mov_b32", vr(ST + 1), 0)
        a.waitcnt(vm=0)
        a.op("s_mov_b32", "s97", 2)
        LH = newlbl("Lhalf")
        a.label(LH)
        pr = PR
        for k in range(4):
            a.op("v_lshlrev_b32", vr(pr + k), 16, vr(pr + k))
        accurate_exp(a, T3, pr, T0, T1, 60, 61, 62)
        bf16_round(a, T3, T3)
        a.op("v_mul_f32", vr(ZR), "-" + vr(T3), vr(DT))
        a.op("v_mul_f32", vr(ZI), vr(pr + 1), vr(DT))
        a.op("v_mul_f32", vr(CP_), vr(pr + 2), vr(DT))
        a.op("v_mul_f32", vr(CP_ + 1), vr(pr + 3), vr(DT))
        a.op("v_add_f32", vr(CP_), vr(CP_), vr(CP_))
        a.op("v_add_f32", vr(CP_ + 1), vr(CP_ + 1), vr(CP_ + 1))
        emit_interleaved([cexp_ops(d, P, 48 + 4 * i) for i, (d, P) in enumerate(((W1, 1), (W8, 8), (B1, 128), (B2, 256), (B4, 512), (B8, 1024)))])
        emit_interleaved([cmul_ops(W2, W1, W1, 48), cmul_ops(A1, CP_, B1, 50), cmul_ops(A2, CP_, B2, 52), cmul_ops(A4, CP_, B4, 54), cmul_ops(A8, CP_, B8, 56), cmul_ops(E2, W8, W8, 58), cmul_ops(BB2, B1, B1, 60)])
        emit_interleaved([cmul_ops(W4, W2, W2, 48), cmul_ops(A3, A2, B1, 50), cmul_ops(E4, E2, E2, 52), cmul_ops(A8, A8, W8, 54)])
        emit_interleaved([cmul_ops(E8, E4, E4, 48)])
        chains([(ST, None, W8, 0, 1), (E4, None, W8, 4, 1), (E8, None, W8, 8, 1), (E8, E4, W8, 12, 1)], 4, O_E, False)
        chains([(CP_, None, W1, 0, 1), (CP_, W4, W1, 4, 1), (A1, None, W1, 8, 1), (A1, W4, W1, 12, 1)], 4, O_G, True)
        do_tile(0, True)
        chains([(A2, W2, W2, 0, 1), (A3, W2, W2, 4, 1), (A4, W4, B1, 8, 2), (A4, W8, B1, 9, 2)], 4, O_G, True)
        do_tile(1, False)
        emit_interleaved([cmul_ops(E2, A8, BB2, 48), cmul_ops(E4, BB2, BB2, 50)])
        emit_interleaved([cmul_ops(E8, A8, E4, 48), cmul_ops(W2, E2, E4, 50)])
        chains([(A8, None, B1, 0, 1), (E2, None, B1, 2, 1), (E8, None, B1, 4, 1), (W2, None, B1, 6, 1)], 2, O_G, True)
        chains([(A2, None, None, 8, 1)], 1, O_G, True)
        do_tile(2, False)
        for k in range(4):
            a.op("v_mov_b32", vr(PR + k), vr(112 + k))
        a.op("s_sub_u32", "s97", "s97", 1)
        a.op("s_cmp_lg_u32", "s97", 0)
        a.branch("s_cbranch_scc1", LH)
        stamp(a)
        g, b8, g1_, g2_ = 160, 161, 162, 163
        a.op("v_lshrrev_b32", vr(g), 4, "v1")
        a.op("v_lshlrev_b32", vr(b8), 3, "v129")
        a.op("v_and_b32", vr(g1_), 1, vr(g))
        a.op("v_lshrrev_b32", vr(g2_), 1, vr(g))
        a.op("v_cmp_eq_u32", "s[8:9]", 0, vr(g2_))
        a.op("v_cmp_eq_u32", "s[10:11]", 2, vr(g))
        X0 = 168
        a.op("v_lshlrev_b32", vr(X0), 2, vr(g1_))
        a.op("v_lshl_add_u32", vr(X0), vr(g2_), 7, vr(X0))
        a.op("v_add_u32", vr(X0), vr(X0), vr(b8))
        a.op("v_lshl_add_u32", vr(X0), vr(X0), 2, "s38")
        for r in range(4):
            a.op("ds_write_b32", vr(X0), vr(KACC + r), "offset:%d" % (4 * r))
        st = []
        for r in range(4):
            X, Y, Z = 48 + 6 * r, 49 + 6 * r, 50 + 6 * r
            o = [("v_lshlrev_b32", vr(X), 7, vr(g)),
                 ("v_add_u32", vr(X), 258 + 2 * r, vr(X)),
                 ("v_lshlrev_b32", vr(Y), 8, vr(g)),
                 ("v_add_u32", vr(Y), 4 + [0, 4, 128, 132][r], vr(Y)),
                 ("v_cndmask_b32", vr(X), vr(Y), vr(X), "s[8:9]"),
                 ("v_add_u32", vr(X), vr(X), vr(b8)),
                 ("v_lshl_add_u32", vr(X), vr(X), 2, "s38"),
                 ("ds_write_b32", vr(X), vr(KACC + 4 + r))]
            X, Y, Z = 51 + 6 * r, 52 + 6 * r, 53 + 6 * r
            o2 = [("v_lshlrev_b32", vr(X), 9, vr(g)),
                  ("v_add_u32", vr(X), 1032 + 128 * r, vr(X)),
                  ("v_mov_b32", vr(Y), 2064)]
            if r == 0:
                o2 += [("v_mov_b32", vr(Z), 256), ("v_cndmask_b32", vr(Y), vr(Y), vr(Z), "s[10:11]")]
            o2 += [("v_cndmask_b32", vr(X), vr(Y), vr(X), "s[8:9]"),
                   ("v_add_u32", vr(X), vr(X), vr(b8)),
                   ("v_lshl_add_u32", vr(X), vr(X), 2, "s38"),
                   ("ds_write_b32", vr(X), vr(KACC + 8 + r))]
            st += [o, o2]
        emit_interleaved(st)
        J, FW = 171, 172
        a.op("v_lshlrev_b32", vr(J), 3, "v1")
        a.op("v_mov_b32", vr(FW), "v26")
        a.op("s_mov_b32", "s96", 4)
        L = newlbl("Lg")
        a.loop_label(L)
        st = []
        for i in range(8):
            xx = 196 + i
            st.append([("v_add_u32", vr(xx), i, vr(J)),
                       ("v_cvt_f32_u32", vr(xx), vr(xx)),
                       ("v_cvt_pk_bf16_f32", vr(xx), vr(xx), vr(xx)),
                       ("v_lshlrev_b32", vr(xx), 16, vr(xx)),
                       ("v_cvt_u32_f32", vr(xx), vr(xx)),
                       ("v_lshl_add_u32", vr(xx), vr(xx), 2, "s38"),
                       ("ds_read_b32", vr(176 + i), vr(xx))])
        emit_interleaved(st)
        a.op("v_add_u32", vr(J), 512, vr(J))
        a.waitcnt(lgkm=0)
        st = []
        for p in range(4):
            x0, x1 = 176 + 2 * p, 177 + 2 * p
            h = 204 + 2 * p
            st.append([("v_cvt_pk_bf16_f32", vr(184 + p), vr(x0), vr(x1)),
                       ("v_lshlrev_b32", vr(h), 16, vr(184 + p)),
                       ("v_and_b32", vr(h + 1), "0xffff0000", vr(184 + p)),
                       ("v_pk_add_f32", vr(h, 2), vr(x0, 2), vr(h, 2), "neg_lo:[0,1]", "neg_hi:[0,1]"),
                       ("v_cvt_pk_bf16_f32", vr(188 + p), vr(h), vr(h + 1))])
        emit_interleaved(st)
        a.op("ds_write_b128", vr(FW), "v[184:187]")
        a.op("ds_write_b128", vr(FW), "v[188:191]", "offset:4096")
        a.op("v_add_u32", vr(FW), 1024, vr(FW))
        a.op("s_sub_u32", "s96", "s96", 1)
        a.op("s_cmp_lg_u32", "s96", 0)
        a.loop_branch("s_cbranch_scc1", L)

    def tphase():
        a.op("s_setprio", 3)
        a.waitcnt(vm=8)
        rstamp(a)
        WF, KF, KV = 48, 220, 10
        for c in range(8):
            for tau in range(4):
                src = TW + 2 * c + (tau >> 1)
                if tau & 1: a.op("v_and_b32", vr(WF + 4 * c + tau), "0xffff0000", vr(src))
                else: a.op("v_lshlrev_b32", vr(WF + 4 * c + tau), 16, vr(src))
        for hp in range(2):
            for hh in range(2):
                h = 2 * hp + hh
                for row in range(7):
                    src = TK + 4 * row + h
                    a.op("v_lshlrev_b32", vr(220 + 14 * hh + 2 * row), 16, vr(src))
                    a.op("v_and_b32", vr(221 + 14 * hh + 2 * row), "0xffff0000", vr(src))
            for r in range(4):
                st = []
                for hh in range(2):
                    h = 2 * hp + hh
                    c0, c1 = 2 * h, 2 * h + 1
                    acc, pp, pk = 80 + 6 * hh, 82 + 6 * hh, 84 + 6 * hh
                    o = []
                    for ti, tau in enumerate((3, 2, 1, 0)):
                        krow = r + 3 - tau
                        kk = 220 + 14 * hh + 2 * krow
                        o += [("v_mul_f32", vr(pp), vr(WF + 4 * c0 + tau), vr(kk)),
                              ("v_mul_f32", vr(pp + 1), vr(WF + 4 * c1 + tau), vr(kk + 1)),
                              ("v_cvt_pk_bf16_f32", vr(pk), vr(pp), vr(pp + 1))]
                        if ti == 0:
                            o += [("v_lshlrev_b32", vr(acc), 16, vr(pk)), ("v_and_b32", vr(acc + 1), "0xffff0000", vr(pk))]
                        else:
                            o += [("v_lshlrev_b32", vr(pp), 16, vr(pk)), ("v_and_b32", vr(pp + 1), "0xffff0000", vr(pk)),
                                  ("v_pk_add_f32", vr(pp, 2), vr(acc, 2), vr(pp, 2)),
                                  ("v_cvt_pk_bf16_f32", vr(pk), vr(pp), vr(pp + 1)),
                                  ("v_lshlrev_b32", vr(acc), 16, vr(pk)), ("v_and_b32", vr(acc + 1), "0xffff0000", vr(pk))]
                    vsrc = TV + 4 * r + h
                    o += [("v_lshlrev_b32", vr(pp), 16, vr(vsrc)), ("v_and_b32", vr(pp + 1), "0xffff0000", vr(vsrc)),
                          ("v_pk_mul_f32", vr(pp, 2), vr(acc, 2), vr(pp, 2)),
                          ("v_cvt_pk_bf16_f32", vr(KV + 4 * r + h), vr(pp), vr(pp + 1))]
                    st.append(o)
                emit_interleaved(st)
        a.op("v_and_b32", "v120", 7, "v0")
        a.op("v_bfe_u32", "v121", "v0", 3, 5)
        a.op("v_lshrrev_b32", "v122", 2, "v120")
        a.op("v_mul_u32_u24", "v122", PAIR, "v122")
        a.op("v_and_b32", "v123", 3, "v120")
        a.op("v_mul_u32_u24", "v123", 8 * TS, "v123")
        a.op("v_lshl_add_u32", "v123", "v121", 3, "v123")
        a.op("v_add_u32", "v122", "v122", "v123")
        a.op("v_add_u32", "v122", ABLK, "v122")
        a.op("v_add_u32", "v123", 2 * PAIR, "v122")
        def scatter(base, va):
            for c in range(8):
                h = c >> 1; sel = "s101" if (c & 1) else "s100"
                d = 124 + 2 * (c & 1)
                a.op("v_perm_b32", vr(d), vr(base + 4 + h), vr(base + 0 + h), sel)
                a.op("v_perm_b32", vr(d + 1), vr(base + 12 + h), vr(base + 8 + h), sel)
                a.op("ds_write_b64", va, vr(d, 2), "offset:%d" % (c * TS))
        scatter(KV, "v123")
        a.waitcnt(vm=4)
        scatter(TU, "v122")
        a.op("v_lshrrev_b32", "v121", 4, "v142")
        a.op("v_and_b32", "v120", 15, "v142")
        a.op("v_mul_u32_u24", "v122", TS, "v121")
        a.op("v_lshl_add_u32", "v122", "v120", 4, "v122")
        a.op("v_add_u32", "v122", ABLK, "v122")
        a.op("v_add_u32", "v123", 2 * PAIR, "v122")
        a.op("s_lshl_b32", "s41", "s91", 18)
        a.op("s_lshl_b32", "s36", "s97", 8)
        a.op("s_add_u32", "s41", "s41", "s36")
        a.op("v_lshlrev_b32", "v124", 12, "v121")
        a.op("v_lshl_add_u32", "v124", "v120", 4, "v124")
        a.op("v_add_u32", "v124", "s41", "v124")
        a.waitcnt(lgkm=0)
        lds_sync(12, 4)
        for i in range(8):
            va = "v122" if i < 4 else "v123"
            off = ((i >> 1) & 1) * PAIR + (i & 1) * 16 * TS
            a.op("ds_read_b64", vr(48 + 4 * i, 2), va, "offset:%d" % off)
            a.op("ds_read_b64", vr(50 + 4 * i, 2), va, "offset:%d" % (off + 8))
        for i in range(8):
            a.op("s_mov_b32", sr(96), (i & 3) * 16 * 4096 + (i >> 2) * (4 << 20))
            a.waitcnt(lgkm=14 - 2 * i)
            a.op("buffer_store_dwordx4", vr(48 + 4 * i, 4), "v124", "s[32:35]", "s96", "offen", "sc1")
        a.waitcnt(vm=0)
        stamp(a)
        lds_sync(12, 8)
        rstamp(a)
        a.op("s_cmp_lg_u32", "s4", 4)
        a.branch("s_cbranch_scc1", "L_bw")
        a.op("s_lshl_b32", "s41", "s91", 4)
        a.op("s_add_u32", "s41", "s41", "s97")
        a.op("v_mov_b32", "v120", "s41")
        a.op("v_mov_b32", "v121", 1)
        a.op("v_cmp_eq_u32", "vcc", 0, "v1")
        a.op("s_and_saveexec_b64", "s[42:43]", "vcc")
        a.op("buffer_store_byte", "v121", "v120", "s[92:95]", 0, "offen", "sc1")
        a.op("s_mov_b64", "exec", "s[42:43]")
        a.op("s_lshr_b32", "s41", "s3", 4)
        a.op("s_lshl_b32", "s41", "s41", 4)
        a.op("v_mov_b32", "v121", "s41")
        a.op("s_mov_b32", "s97", 100000)
        LP = newlbl("Lpoll")
        a.label(LP)
        a.op("buffer_load_dwordx4", "v[124:127]", "v121", "s[92:95]", 0, "offen", "sc1")
        a.op("s_sub_u32", "s97", "s97", 1)
        a.waitcnt(vm=0)
        a.op("v_and_b32", "v124", "v124", "v125")
        a.op("v_and_b32", "v126", "v126", "v127")
        a.op("v_and_b32", "v124", "v124", "v126")
        a.op("v_readfirstlane_b32", "s96", "v124")
        a.op("s_cmp_eq_u32", "s97", 0)
        a.branch("s_cbranch_scc1", LP + "_out")
        a.op("s_cmp_eq_u32", "s96", "0x01010101")
        a.branch("s_cbranch_scc1", LP + "_out")
        a.branch("s_branch", LP)
        a.label(LP + "_out")
        a.op("v_mov_b32", "v120", 1)
        a.op("v_mov_b32", "v122", CNT + 8)
        a.op("ds_write_b32", "v122", "v120")
        a.waitcnt(lgkm=0)
        a.label("L_bw")
        wait_flag()

    def conv(nf):
        for i in range(32):
            a.op("v_mov_b32", vr(ACC + i), 0)
        a.waitcnt(lgkm=0)
        VA = 8
        def issueA(buf, aoff):
            for jj in range(2):
                for rb in range(2):
                    off = aoff + 4096 * (1 - jj) + 128 * (1 - rb)
                    t = ta(buf, jj, rb)
                    a.op("ds_read_b64", vr(t, 2), vr(VA), "offset:%d" % off)
                    a.op("ds_read_b64", vr(t + 2, 2), vr(VA), "offset:%d" % (off + 32))
        def step(p, buf):
            nd = 4 if p == 0 else 2
            dd = []
            for f in range(nf):
                for d in range(nd):
                    if d == 0:
                        for k in range(4):
                            dd.append(("v_mov_b32_dpp", vr(tb(buf ^ 1, f, 0) + k), vr(tb(buf, f, 0) + k), "row_shr:1", "row_mask:0xf", "bank_mask:0xf", "bound_ctrl:0"))
                    else:
                        for k in range(4):
                            dd.append(("v_mov_b32_dpp", vr(tb(buf ^ 1, f, d) + k), vr(tb(buf, f, d - 1) + k), "row_ror:1", "row_mask:0xf", "bank_mask:0xf"))
                        for k in range(4):
                            dd.append(("v_mov_b32_dpp", vr(tb(buf ^ 1, f, d) + k), vr(tb(buf, f, d) + k), "row_shr:1", "row_mask:0xf", "bank_mask:0xf"))
            mf = []
            for jj in range(2):
                j = 2 * p + jj
                for c in range(j, 4):
                    d = c - j
                    for f in range(nf):
                        for rb in range(2):
                            acc = ACC + 8 * c + 4 * rb
                            mf.append(("v_mfma_f32_16x16x32_bf16", vr(acc, 4), vr(ta(buf, jj, rb), 4), vr(tb(buf, f, d), 4), vr(acc, 4)))
            per = -(-len(dd) // len(mf))
            di = 0
            for m in mf:
                a.op(*m)
                for _ in range(per):
                    if di < len(dd):
                        a.op(*dd[di]); di += 1
        for p in range(2):
            nd = 4 if p == 0 else 2
            stamp(a)
            build_copies(p)
            stamp(a)
            a.op("v_mov_b32", vr(VA), "v130")
            issueA(0, 256)
            for f in range(nf):
                for d in range(nd):
                    a.op("ds_read_b128", vr(tb(0, f, d), 4), "v132", "offset:%d" % (1024 * d + 4096 * f))
            if nf == 1 and p == 0:
                for itn in range(8):
                    a.waitcnt(lgkm=0)
                    issueA(1, 0)
                    a.op("buffer_load_dwordx2", vr(30 + 2 * itn, 2), "v2", "s[12:15]", sr(68 + (itn >> 1)), "offen", "offset:%d" % (2048 * (itn & 1)))
                    step(p, 0)
                    a.op("v_subrev_u32", vr(VA), 512, vr(VA))
                    a.waitcnt(lgkm=0)
                    issueA(0, 256)
                    step(p, 1)
            else:
                a.op("s_mov_b32", "s96", 8)
                L = newlbl("Lcv")
                a.loop_label(L)
                a.waitcnt(lgkm=0)
                issueA(1, 0)
                step(p, 0)
                a.op("v_subrev_u32", vr(VA), 512, vr(VA))
                a.waitcnt(lgkm=0)
                issueA(0, 256)
                step(p, 1)
                a.op("s_sub_u32", "s96", "s96", 1)
                a.op("s_cmp_lg_u32", "s96", 0)
                a.loop_branch("s_cbranch_scc1", L)
            a.waitcnt(lgkm=0)
        for c in range(4):
            for rb in range(2):
                a.op("ds_read_b64", vr(TA + 4 * c + 2 * rb, 2), "v9", "offset:%d" % (1024 * c + 32 * rb))
        a.waitcnt(lgkm=0)
        for c in range(4):
            st = []
            for rb in range(2):
                acc = ACC + 8 * c + 4 * rb
                xs = TA + 4 * c + 2 * rb
                for h in range(2):
                    t = 48 + 8 * (2 * rb + h)
                    st.append([("v_cvt_pk_bf16_f32", vr(t), vr(acc + 2 * h), vr(acc + 2 * h + 1)),
                               ("v_lshlrev_b32", vr(t + 2), 16, vr(xs + h)),
                               ("v_and_b32", vr(t + 3), "0xffff0000", vr(xs + h)),
                               ("v_mul_f32", vr(t + 2), "s85", vr(t + 2)),
                               ("v_mul_f32", vr(t + 3), "s85", vr(t + 3)),
                               ("v_cvt_pk_bf16_f32", vr(t + 1), vr(t + 2), vr(t + 3)),
                               ("v_lshlrev_b32", vr(t + 2), 16, vr(t)),
                               ("v_and_b32", vr(t + 3), "0xffff0000", vr(t)),
                               ("v_lshlrev_b32", vr(t + 4), 16, vr(t + 1)),
                               ("v_and_b32", vr(t + 5), "0xffff0000", vr(t + 1)),
                               ("v_pk_add_f32", vr(t + 2, 2), vr(t + 2, 2), vr(t + 4, 2)),
                               ("v_cvt_pk_bf16_f32", vr(120 + 2 * rb + h), vr(t + 2), vr(t + 3))])
            emit_interleaved(st)
            for rb in range(2):
                a.op("ds_write_b64", "v9", vr(120 + 2 * rb, 2), "offset:%d" % (1024 * c + 32 * rb))
        a.waitcnt(lgkm=0)
        stamp(a)
        lds_sync(4 if nf == 1 else 0, 4)
        stamp(a)
        for ch in range(4):
            a.op("ds_read_b128", vr(48 + 4 * ch, 4), "v7" if ch < 2 else "v141", "offset:%d" % ((ch & 1) * PAIR))
        a.waitcnt(vm=0, lgkm=0)
        for r in range(8):
            sel = "s101" if (r & 1) else "s100"
            d = 70 + 2 * (r & 3)
            if nf == 2:
                for h in range(2):
                    a.op("v_perm_b32", vr(d + h), vr(48 + 4 * (2 * h + 1) + (r >> 1)), vr(48 + 4 * (2 * h) + (r >> 1)), sel)
            else:
                st = []
                for h in range(2):
                    t = 120 + 6 * h
                    st.append([("v_perm_b32", vr(t), vr(48 + 4 * (2 * h + 1) + (r >> 1)), vr(48 + 4 * (2 * h) + (r >> 1)), sel),
                               ("v_lshlrev_b32", vr(t + 2), 16, vr(t)),
                               ("v_and_b32", vr(t + 3), "0xffff0000", vr(t)),
                               ("v_lshlrev_b32", vr(t + 4), 16, vr(30 + 2 * r + h)),
                               ("v_and_b32", vr(t + 5), "0xffff0000", vr(30 + 2 * r + h)),
                               ("v_pk_mul_f32", vr(t + 2, 2), vr(t + 2, 2), vr(t + 4, 2)),
                               ("v_cvt_pk_bf16_f32", vr(d + h), vr(t + 2), vr(t + 3))])
                emit_interleaved(st)
            a.op("buffer_store_dwordx2", vr(d, 2), "v3", "s[28:31]", sr(68 + r), "offen")

    a.op("s_cmp_ge_u32", "s4", 4)
    a.branch("s_cbranch_scc1", "L_B")
    kgen()
    stamp(a)
    a.waitcnt(lgkm=0)
    wait_flag()
    x_loads()
    a.waitcnt(vm=0)
    stamp(a)
    zero_pad_and_master()
    conv(2)
    a.branch("s_branch", "L_done")
    a.label("L_B")
    if STAMP: stamp_n[0] = 1
    tphase()
    a.op("s_setprio", 0)
    stamp(a)
    rstamp(a)
    x_loads()
    for it in range(4):
        a.op("ds_write_b128", "v26", vr(96 + 4 * it, 4), "offset:%d" % (1024 * it))
    a.waitcnt(vm=0)
    stamp(a)
    zero_pad_and_master()
    conv(1)
    a.label("L_done")
    if STAMP:
        a.waitcnt(vm=0)
        stamp(a)
        rstamp(a)
        a.op("s_cmp_lg_u32", "s4", 4)
        a.branch("s_cbranch_scc1", "L_nort")
        srd(a, 32, 54, 32 << 20)
        a.op("s_lshl_b32", "s41", "s2", 5)
        a.op("s_add_u32", "s41", "s41", 16 << 20)
        a.op("v_lshlrev_b32", "v2", 2, "v1")
        a.op("v_add_u32", "v2", "s41", "v2")
        a.op("v_cmp_gt_u32", "vcc", 8, "v1")
        a.op("s_and_saveexec_b64", "s[42:43]", "vcc")
        a.op("buffer_store_dword", "v252", "v2", "s[32:35]", 0, "offen")
        a.op("s_mov_b64", "exec", "s[42:43]")
        a.label("L_nort")
        a.op("s_cmp_lg_u32", "s2", int(STAMP))
        a.branch("s_cbranch_scc1", "L_end")
        a.op("v_lshlrev_b32", "v2", 2, "v1")
        a.op("s_and_b32", "s5", "s4", 3)
        a.op("s_lshr_b32", "s6", "s4", 2)
        a.op("s_cmp_ge_u32", "s5", 2)
        a.branch("s_cbranch_scc1", "L_end")
        a.op("s_lshl_b32", "s5", "s5", 1)
        a.op("s_add_u32", "s5", "s5", "s6")
        a.op("s_lshl_b32", "s5", "s5", 6)
        a.op("v_add_u32", "v2", "s5", "v2")
        a.op("v_cmp_gt_u32", "vcc", 16, "v1")
        a.op("s_and_saveexec_b64", "s[42:43]", "vcc")
        a.op("buffer_store_dword", "v251", "v2", "s[92:95]", 0, "offen")
    a.label("L_end")
    a.op("s_endpgm")

def main(out):
    a = Asm()
    gen(a)
    txt = HEADER
    txt += "; @launch grid=(256,1,1) block=(512,1,1) lds=%d\n" % LDS_K2
    txt += '.amdgcn_target "amdgcn-amd-amdhsa--gfx950"\n.text\n'
    txt += a.text()
    txt += '.section .rodata,"a"\n.p2align 6\n' + kd(KN, 256 if STAMP else 248)
    open(out, "w").write(txt)
    print("instructions:", a.n_ins, "bytes:", len(txt))

if __name__ == "__main__":
    main(sys.argv[1] if len(sys.argv) > 1 else "concat_heads__ssm_conv_s4d__ssm_conv_h3__prompt.s")
```

```python
import struct, sys, os
import numpy as np
from asmgen import Asm, vr, sr
from gen1_lib import srd, hexf, HEADER, kd, accurate_exp, bf16_round, L2E_HI, L2E_LO, LN2, I2PI_HI, I2PI_LO

STAMP = os.environ.get("STAMP")
stamp_n = [0]
def stamp(a):
    if not STAMP: return
    i = stamp_n[0]; stamp_n[0] += 1
    a.op("s_memtime", "s[42:43]")
    a.waitcnt(lgkm=0)
    a.op("v_writelane_b32", vr(251), "s42", i)

KN = "concat_heads__ssm_conv_s4d__ssm_conv_h3__prompt_kernel"
TS = 264
XS = int(os.environ.get("XS", "4352"))
ABLK = 24224
BBLK = 16736
PAIR = ABLK + BBLK
O_CP, O_MS, O_HF = 0, 8480, 12640
CNT = 20832
LDS_K2 = 4 * PAIR
RS = 544
O_E, O_G = 0, 16 * RS
lblc = [0]
def newlbl(p="L"):
    lblc[0] += 1
    return "%s_%d" % (p, lblc[0])

rt_n = [0]
def rstamp(a):
    if not STAMP: return
    i = rt_n[0]; rt_n[0] += 1
    a.op("s_memrealtime", "s[42:43]")
    a.waitcnt(lgkm=0)
    a.op("v_writelane_b32", vr(252), "s42", i)

def gen(a):
    a.raw(".p2align 8")
    a.raw(".globl %s" % KN)
    a.raw(".type %s,@function" % KN)
    a.raw(KN + ":")
    a.op("s_cmp_ge_u32", "s2", 256)
    a.branch("s_cbranch_scc1", "L_end")
    a.op("s_load_dwordx8", "s[44:51]", "s[0:1]", 8)
    a.op("s_load_dwordx4", "s[64:67]", "s[0:1]", 40)
    a.op("s_load_dwordx8", "s[68:75]", "s[0:1]", 56)
    a.op("s_load_dwordx2", "s[98:99]", "s[0:1]", 0)
    a.op("s_load_dwordx4", "s[76:79]", "s[0:1]", 88)
    a.op("s_load_dwordx4", "s[80:83]", "s[0:1]", 104)
    a.op("s_load_dwordx2", "s[54:55]", "s[0:1]", 120)
    a.op("s_and_b32", "s3", "s2", 7)
    a.op("s_lshl_b32", "s3", "s3", 5)
    a.op("s_lshr_b32", "s4", "s2", 3)
    a.op("s_add_u32", "s3", "s3", "s4")
    a.op("v_lshrrev_b32", "v1", 6, "v0")
    a.op("v_readfirstlane_b32", "s4", "v1")
    a.op("v_and_b32", "v1", 63, "v0")
    a.op("s_lshl_b32", "s5", "s3", 3)
    a.op("s_and_b32", "s7", "s4", 3)
    a.op("s_lshr_b32", "s6", "s4", 2)
    a.op("s_mul_i32", "s38", "s7", PAIR)
    a.op("s_mul_i32", "s39", "s6", ABLK)
    a.op("s_add_u32", "s38", "s38", "s39")
    a.op("s_lshl_b32", "s36", "s3", 2)
    a.op("s_add_u32", "s7", "s7", "s36")
    a.op("v_mov_b32", "v120", CNT)
    a.op("v_mov_b32", "v122", 0)
    a.op("v_mov_b32", "v123", 0)
    a.op("v_cmp_eq_u32", "vcc", 0, "v0")
    a.op("s_and_saveexec_b64", "s[42:43]", "vcc")
    a.op("ds_write_b64", "v120", "v[122:123]")
    a.op("ds_write_b64", "v120", "v[122:123]", "offset:8")
    a.op("s_mov_b64", "exec", "s[42:43]")
    a.waitcnt(lgkm=0)
    a.op("s_barrier")
    stamp(a)
    rstamp(a)
    a.op("s_lshr_b32", "s36", "s7", 1)
    a.op("s_lshl_b32", "s36", "s36", 2)
    a.op("s_add_u32", "s64", "s64", "s36"); a.op("s_addc_u32", "s65", "s65", 0)
    a.op("s_load_dword", "s87", "s[64:65]", 0)
    a.op("s_cmp_ge_u32", "s4", 4)
    a.op("s_cselect_b32", "s66", "s78", "s66")
    a.op("s_cselect_b32", "s67", "s79", "s67")
    a.op("s_add_u32", "s66", "s66", "s36"); a.op("s_addc_u32", "s67", "s67", 0)
    a.op("s_load_dword", "s84", "s[66:67]", 0)
    a.op("s_lshl_b32", "s52", "s7", 12)
    a.op("v_lshlrev_b32", "v6", 4, "v1")
    a.op("v_add_u32", "v6", "s52", "v6")
    a.op("s_mul_i32", "s53", "s6", 1024 * XS)
    a.op("s_mul_i32", "s41", "s7", XS)
    a.op("v_lshlrev_b32", "v143", 4, "v1")
    a.op("v_add_u32", "v143", "s41", "v143")
    a.op("s_cmp_ge_u32", "s4", 4)
    a.branch("s_cbranch_scc1", "L_Bloads")
    srd(a, 8, 44, 262144); srd(a, 16, 46, 262144); srd(a, 20, 48, 262144); srd(a, 56, 50, 262144)
    a.op("s_lshl_b32", "s41", "s7", 8)
    a.op("v_lshlrev_b32", "v28", 1, "v1")
    a.op("v_add_u32", "v28", "s41", "v28")
    PR = 30
    for k, s in enumerate((8, 16, 20, 56)):
        a.op("buffer_load_ushort", vr(PR + k), "v28", sr(s, 4), 0, "offen")
    for k, s in enumerate((8, 16, 20, 56)):
        a.op("buffer_load_ushort", vr(112 + k), "v28", sr(s, 4), 0, "offen", "offset:128")
    a.branch("s_branch", "L_common")
    a.label("L_Bloads")
    a.op("s_and_b32", "s91", "s2", 15)
    a.op("s_lshr_b32", "s97", "s2", 4)
    a.op("s_lshl_b32", "s41", "s97", 18)
    a.op("s_lshl_b32", "s36", "s91", 7)
    a.op("s_add_u32", "s41", "s41", "s36")
    a.op("v_and_b32", "v4", 7, "v0")
    a.op("v_bfe_u32", "v5", "v0", 3, 5)
    a.op("v_lshlrev_b32", "v120", 13, "v5")
    a.op("v_lshl_add_u32", "v120", "v4", 4, "v120")
    a.op("v_add_u32", "v120", "s41", "v120")
    a.op("v_add_u32", "v121", 4096, "v120")
    a.op("v_subrev_u32", "v122", 6144, "v120")
    a.op("v_subrev_u32", "v123", 2048, "v120")
    a.op("s_lshl_b32", "s36", "s91", 9)
    a.op("v_lshlrev_b32", "v124", 6, "v4")
    a.op("v_add_u32", "v124", "s36", "v124")
    TU, TK, TV, TW = 144, 160, 188, 204
    def rl(dst):
        a.op("buffer_load_dwordx4", vr(dst, 4), "v120", "s[12:15]", 0, "offen")
        a.op("buffer_load_dwordx4", vr(dst + 4, 4), "v120", "s[12:15]", 0, "offen", "offset:2048")
        a.op("buffer_load_dwordx4", vr(dst + 8, 4), "v121", "s[12:15]", 0, "offen")
        a.op("buffer_load_dwordx4", vr(dst + 12, 4), "v121", "s[12:15]", 0, "offen", "offset:2048")
    srd(a, 12, 74, 8192)
    for i in range(4):
        a.op("buffer_load_dwordx4", vr(TW + 4 * i, 4), "v124", "s[12:15]", 0, "offen", "offset:%d" % (16 * i))
    srd(a, 12, 70, 4 << 20)
    a.op("buffer_load_dwordx4", vr(TK, 4), "v122", "s[12:15]", 0, "offen")
    a.op("buffer_load_dwordx4", vr(TK + 4, 4), "v122", "s[12:15]", 0, "offen", "offset:2048")
    a.op("buffer_load_dwordx4", vr(TK + 8, 4), "v123", "s[12:15]", 0, "offen")
    rl(TK + 12)
    srd(a, 12, 72, 4 << 20)
    rl(TV)
    srd(a, 12, 98, 4 << 20)
    rl(TU)
    srd(a, 24, 76, 4 << 20)
    for it in range(4):
        a.op("buffer_load_dwordx4", vr(96 + 4 * it, 4), "v6", "s[24:27]", 0, "offen", "offset:%d" % (1024 * it))
    a.label("L_common")
    srd(a, 32, 54, 2048 * XS)
    srd(a, 12, 68, 4 << 20)
    srd(a, 28, 80, 8 << 20)
    srd(a, 92, 82, 256)
    a.op("s_add_u32", "s39", "s38", O_MS)
    a.op("s_add_u32", "s40", "s38", O_HF)
    a.op("s_mov_b32", "s100", "0x05040100")
    a.op("s_mov_b32", "s101", "0x07060302")
    a.op("v_and_b32", "v8", 1, "v1")
    a.op("v_lshlrev_b32", "v8", 1, "v8")
    a.op("v_lshrrev_b32", "v9", 4, "v1")
    a.op("v_lshrrev_b32", "v126", 1, "v1")
    a.op("v_xor_b32", "v9", "v9", "v126")
    a.op("v_and_b32", "v9", 1, "v9")
    a.op("v_add_u32", "v8", "v8", "v9")
    a.op("v_lshlrev_b32", "v8", 4, "v8")
    a.op("v_lshrrev_b32", "v9", 2, "v1")
    a.op("v_lshl_add_u32", "v8", "v9", 6, "v8")
    a.op("v_add_u32", "v26", "s40", "v8")
    a.op("v_lshlrev_b32", "v27", 4, "v1")
    a.op("s_add_u32", "s41", "s39", 64)
    a.op("v_add_u32", "v27", "s41", "v27")
    a.op("v_and_b32", "v129", 15, "v1")
    a.op("v_lshrrev_b32", "v125", 4, "v1")
    a.op("v_lshlrev_b32", "v126", 3, "v125")
    a.op("v_sub_u32", "v126", "v126", "v129")
    a.op("v_add_u32", "v126", 1023, "v126")
    a.op("v_lshrrev_b32", "v127", 2, "v126")
    a.op("v_lshlrev_b32", "v127", 5, "v127")
    a.op("v_and_b32", "v126", 3, "v126")
    a.op("v_lshl_add_u32", "v127", "v126", 3, "v127")
    a.op("s_sub_u32", "s41", "s38", 8 * (32 + 528))
    a.op("v_add_u32", "v130", "s41", "v127")
    a.op("v_lshrrev_b32", "v131", 1, "v125")
    a.op("v_and_b32", "v126", 1, "v125")
    a.op("v_lshlrev_b32", "v126", 5, "v126")
    a.op("v_lshrrev_b32", "v127", 2, "v129")
    a.op("v_xor_b32", "v127", "v127", "v131")
    a.op("v_and_b32", "v127", 1, "v127")
    a.op("v_lshl_add_u32", "v126", "v127", 4, "v126")
    a.op("v_lshl_add_u32", "v126", "v129", 6, "v126")
    a.op("v_add_u32", "v132", "s40", "v126")
    a.op("v_lshlrev_b32", "v9", 6, "v129")
    a.op("v_lshl_add_u32", "v9", "v125", 3, "v9")
    a.op("s_add_u32", "s41", "s39", 64)
    a.op("v_add_u32", "v9", "s41", "v9")
    a.op("v_lshlrev_b32", "v126", 3, "v1")
    a.op("s_add_u32", "s41", "s39", 64 + 2032)
    a.op("v_sub_u32", "v138", "s41", "v126")
    a.op("v_lshlrev_b32", "v139", 5, "v1")
    a.op("v_add_u32", "v139", "s38", "v139")
    a.op("v_mov_b32", "v140", "0xffff")
    a.op("v_and_b32", "v142", 255, "v0")
    a.op("v_lshlrev_b32", "v7", 4, "v142")
    a.op("s_mul_i32", "s41", "s6", ABLK)
    a.op("s_add_u32", "s41", "s41", O_MS + 64)
    a.op("v_add_u32", "v7", "s41", "v7")
    a.op("v_add_u32", "v141", 2 * PAIR, "v7")
    a.op("v_lshlrev_b32", "v2", 14, "v142")
    a.op("v_add_u32", "v2", "s5", "v2")
    a.op("v_lshlrev_b32", "v3", 15, "v142")
    a.op("s_lshl_b32", "s41", "s6", 11)
    a.op("s_add_u32", "s41", "s41", "s5")
    a.op("v_add_u32", "v3", "s41", "v3")
    for r in range(8):
        a.op("s_mov_b32", sr(68 + r), 4096 * r)
    a.waitcnt(lgkm=0)
    a.op("s_lshl_b32", "s85", "s84", 16)
    a.op("s_and_b32", "s86", "s84", "0xffff0000")
    a.op("s_lshl_b32", "s88", "s87", 16)
    a.op("s_and_b32", "s89", "s87", "0xffff0000")
    a.op("s_bitcmp1_b32", "s7", 0)
    a.op("s_cselect_b32", "s85", "s86", "s85")
    a.op("s_cselect_b32", "s88", "s89", "s88")

    ACC = 144
    TA = 176
    TBH = 208
    def tb(buf, f, d):
        if buf == 0: return TBH + 16 * f + 4 * d
        return 48 + 16 * f + 4 * d
    def ta(buf, jj, rb): return TA + 16 * buf + 8 * jj + 4 * rb
    KACC = 144

    def emit_interleaved(streams):
        n = max(len(s) for s in streams)
        for i in range(n):
            for s in streams:
                if i < len(s): a.op(*s[i])

    def lds_sync(off, target):
        a.op("v_mov_b32", "v120", CNT + off)
        a.op("v_mov_b32", "v121", 1)
        a.op("v_cmp_eq_u32", "vcc", 0, "v1")
        a.op("s_and_saveexec_b64", "s[42:43]", "vcc")
        a.op("ds_add_u32", "v120", "v121")
        a.op("s_mov_b64", "exec", "s[42:43]")
        L = newlbl("Lsp")
        a.label(L)
        a.op("ds_read_b32", "v121", "v120")
        a.waitcnt(lgkm=0)
        a.op("v_readfirstlane_b32", "s96", "v121")
        a.op("s_cmp_lt_u32", "s96", target)
        a.branch("s_cbranch_scc1", L)

    def wait_flag():
        a.op("v_mov_b32", "v122", CNT + 8)
        L = newlbl("Lxw")
        a.label(L)
        a.op("ds_read_b32", "v120", "v122")
        a.waitcnt(lgkm=0)
        a.op("v_readfirstlane_b32", "s96", "v120")
        a.op("s_cmp_eq_u32", "s96", 0)
        a.branch("s_cbranch_scc0", L + "_ok")
        a.op("s_sleep", 1)
        a.branch("s_branch", L)
        a.label(L + "_ok")

    def x_loads():
        for it in range(4):
            a.op("buffer_load_dwordx4", vr(10 + 4 * it, 4), "v143", "s[32:35]", "s53", "offen", "offset:%d" % (1024 * it), "sc1")

    def q_loads():
        for r in range(8):
            a.op("buffer_load_dwordx2", vr(30 + 2 * r, 2), "v2", "s[12:15]", sr(68 + (r >> 1)), "offen", "offset:%d" % (2048 * (r & 1)))

    def zero_pad_and_master():
        a.op("v_lshlrev_b32", "v120", 2, "v1")
        a.op("v_add_u32", "v120", "s39", "v120")
        a.op("v_mov_b32", "v121", 0)
        a.op("v_cmp_gt_u32", "vcc", 16, "v1")
        a.op("s_and_saveexec_b64", "s[42:43]", "vcc")
        a.op("ds_write_b32", "v120", "v121")
        a.op("s_mov_b64", "exec", "s[42:43]")
        for it in range(4):
            a.op("ds_write_b128", "v27", vr(10 + 4 * it, 4), "offset:%d" % (1024 * it))

    def build_copies(p):
        a.op("v_add_u32", "v133", 2048 * p, "v138")
        a.op("v_mov_b32", "v134", "v139")
        a.op("v_mov_b32", "v135", "v1")
        a.op("s_mov_b32", "s96", 5)
        L = newlbl("Lcp")
        a.loop_label(L)
        a.op("ds_read_b64", "v[120:121]", "v133")
        a.op("ds_read_b64", "v[122:123]", "v133", "offset:8")
        a.op("v_cmp_gt_u32", "vcc", 263, "v135")
        a.op("v_subrev_u32", "v133", 512, "v133")
        a.op("v_add_u32", "v135", 64, "v135")
        a.waitcnt(lgkm=0)
        N0, N1, N2, N3 = 120, 121, 122, 123
        Q = 240
        a.op("v_alignbit_b32", vr(Q + 0), vr(N3), vr(N3), 16)
        a.op("v_alignbit_b32", vr(Q + 1), vr(N2), vr(N2), 16)
        a.op("v_bfi_b32", vr(Q + 2), "v140", vr(N3), vr(N2))
        a.op("v_bfi_b32", vr(Q + 3), "v140", vr(N2), vr(N1))
        a.op("v_mov_b32", vr(Q + 4), vr(Q + 1))
        a.op("v_alignbit_b32", vr(Q + 5), vr(N1), vr(N1), 16)
        a.op("v_mov_b32", vr(Q + 6), vr(Q + 3))
        a.op("v_bfi_b32", vr(Q + 7), "v140", vr(N1), vr(N0))
        a.op("s_and_saveexec_b64", "s[42:43]", "vcc")
        a.op("ds_write_b128", "v134", vr(Q, 4))
        a.op("ds_write_b128", "v134", vr(Q + 4, 4), "offset:16")
        a.op("s_mov_b64", "exec", "s[42:43]")
        a.op("v_add_u32", "v134", 2048, "v134")
        a.op("s_sub_u32", "s96", "s96", 1)
        a.op("s_cmp_lg_u32", "s96", 0)
        a.loop_branch("s_cbranch_scc1", L)
        a.waitcnt(lgkm=0)

    def kgen():
        a.op("s_mov_b32", "s60", hexf(L2E_HI)); a.op("s_mov_b32", "s61", hexf(L2E_LO)); a.op("s_mov_b32", "s62", hexf(LN2))
        a.op("s_mov_b32", "s63", hexf(I2PI_HI)); a.op("s_mov_b32", "s90", hexf(I2PI_LO))
        T0, T1, T2, T3 = 240, 241, 242, 243
        ZR, ZI, CP_ = 38, 39, 36
        DT = 29
        a.op("v_mov_b32", vr(T2), "s88")
        accurate_exp(a, DT, T2, T0, T1, 60, 61, 62)
        bf16_round(a, DT, DT)
        a.op("v_lshlrev_b32", "v246", 2, "v1")
        a.op("v_add_u32", "v246", "s38", "v246")
        a.op("v_mul_u32_u24", "v247", RS, "v129")
        a.op("v_lshrrev_b32", vr(T0), 4, "v1")
        a.op("v_lshlrev_b32", vr(T0), 4, vr(T0))
        a.op("v_add3_u32", "v247", "v247", vr(T0), "s38")
        for i in range(12):
            a.op("v_mov_b32", vr(KACC + i), 0)
        W1, W2, W4, W8 = 160, 162, 164, 166
        B1, B2, B4, B8 = 168, 170, 172, 174
        A1, A2, A3, A4, A8 = 176, 178, 180, 182, 184
        E2, E4, E8, BB2 = 186, 188, 190, 192
        ST = 194
        EFH, EFL, GF, GFL = 96, 196, 216, 10
        CH = [dict(CX=48 + 12 * k, CY=50 + 12 * k, TP=52 + 12 * k, HF=54 + 12 * k, T4=56 + 12 * k, T5=57 + 12 * k, VW=58 + 12 * k) for k in range(4)]
        def cmul_ops(d, x, y, tp):
            return [("v_pk_mul_f32", vr(tp, 2), vr(x, 2), vr(y, 2), "op_sel:[0,0]", "op_sel_hi:[0,1]"),
                    ("v_pk_fma_f32", vr(d, 2), vr(x, 2), vr(y, 2), vr(tp, 2), "op_sel:[1,1,0]", "op_sel_hi:[1,0,1]", "neg_lo:[1,0,0]", "neg_hi:[0,0,0]")]
        def wr_ops(c, src, neg):
            ni = "-" if neg else ""
            return [("v_cvt_pk_bf16_f32", vr(c["T4"]), vr(src), ni + vr(src + 1)),
                    ("v_lshlrev_b32", vr(c["HF"]), 16, vr(c["T4"])),
                    ("v_and_b32", vr(c["HF"] + 1), "0xffff0000", vr(c["T4"])),
                    ("v_pk_add_f32", vr(c["HF"], 2), vr(src, 2), vr(c["HF"], 2), "neg_lo:[0,1]", "neg_hi:[%d,1]" % (1 if neg else 0)),
                    ("v_cvt_pk_bf16_f32", vr(c["T5"]), vr(c["HF"]), vr(c["HF"] + 1)),
                    ("ds_write2_b32", vr(c["VW"]), vr(c["T4"]), vr(c["T5"]), "offset0:0", "offset1:64")]
        def cexp_ops(d, P, t):
            t0, t1, t2, t3 = t, t + 1, t + 2, t + 3
            return [("v_mul_f32", vr(t2), hexf(float(P)), vr(ZR)),
                    ("v_mul_f32", vr(t0), "s60", vr(t2)),
                    ("v_fma_f32", vr(t1), vr(t2), "s60", "-" + vr(t0)),
                    ("v_fma_f32", vr(t1), vr(t2), "s61", vr(t1)),
                    ("v_exp_f32", vr(t3), vr(t0)),
                    ("v_mul_f32", vr(t1), "s62", vr(t1)),
                    ("v_mul_f32", vr(t2), hexf(float(P)), vr(ZI)),
                    ("v_fma_f32", vr(t3), vr(t3), vr(t1), vr(t3)),
                    ("v_mul_f32", vr(t0), "s63", vr(t2)),
                    ("v_fma_f32", vr(t1), vr(t2), "s63", "-" + vr(t0)),
                    ("v_fma_f32", vr(t1), vr(t2), "s90", vr(t1)),
                    ("v_fract_f32", vr(t0), vr(t0)),
                    ("v_add_f32", vr(t0), vr(t0), vr(t1)),
                    ("v_cos_f32", vr(d), vr(t0)),
                    ("v_sin_f32", vr(d + 1), vr(t0)),
                    ("v_mul_f32", vr(d), vr(d), vr(t3)),
                    ("v_mul_f32", vr(d + 1), vr(d + 1), vr(t3))]
        def chains(specs, n, tab, neg):
            st = []
            for c, (x, y, step, row0, rs) in zip(CH, specs):
                if y is None: o = [("v_mov_b32", vr(c["CX"]), vr(x)), ("v_mov_b32", vr(c["CX"] + 1), vr(x + 1))]
                else: o = cmul_ops(c["CX"], x, y, c["TP"])
                o.append(("v_add_u32", vr(c["VW"]), tab + row0 * RS, "v246"))
                st.append(o)
            emit_interleaved(st)
            if n == 1:
                emit_interleaved([wr_ops(c, c["CX"], neg) for c, _ in zip(CH, specs)]); return
            if n > 2:
                a.op("s_mov_b32", "s96", n // 2)
                L = newlbl("Lch")
                a.loop_label(L)
            st = []
            for c, (x, y, step, row0, rs) in zip(CH, specs):
                o = cmul_ops(c["CY"], c["CX"], step, c["TP"]) + wr_ops(c, c["CX"], neg) + [("v_add_u32", vr(c["VW"]), rs * RS, vr(c["VW"]))]
                o += cmul_ops(c["CX"], c["CY"], step, c["TP"]) + wr_ops(c, c["CY"], neg) + [("v_add_u32", vr(c["VW"]), rs * RS, vr(c["VW"]))]
                st.append(o)
            emit_interleaved(st)
            if n > 2:
                a.op("s_sub_u32", "s96", "s96", 1)
                a.op("s_cmp_lg_u32", "s96", 0)
                a.loop_branch("s_cbranch_scc1", L)
        def do_tile(t, first):
            for ks in range(4):
                a.op("ds_read_b128", vr(GF + 4 * ks, 4), "v247", "offset:%d" % (O_G + 64 * ks))
                a.op("ds_read_b128", vr(GFL + 4 * ks, 4), "v247", "offset:%d" % (O_G + 256 + 64 * ks))
            if first:
                for ks in range(4):
                    a.op("ds_read_b128", vr(EFH + 4 * ks, 4), "v247", "offset:%d" % (O_E + 64 * ks))
                    a.op("ds_read_b128", vr(EFL + 4 * ks, 4), "v247", "offset:%d" % (O_E + 256 + 64 * ks))
            a.waitcnt(lgkm=0)
            acc = KACC + 4 * t
            for ks in range(4):
                a.op("v_mfma_f32_16x16x32_bf16", vr(acc, 4), vr(GFL + 4 * ks, 4), vr(EFH + 4 * ks, 4), vr(acc, 4))
                a.op("v_mfma_f32_16x16x32_bf16", vr(acc, 4), vr(GF + 4 * ks, 4), vr(EFL + 4 * ks, 4), vr(acc, 4))
                a.op("v_mfma_f32_16x16x32_bf16", vr(acc, 4), vr(GF + 4 * ks, 4), vr(EFH + 4 * ks, 4), vr(acc, 4))
        a.op("v_mov_b32", vr(ST), 1.0); a.op("v_mov_b32", vr(ST + 1), 0)
        a.waitcnt(vm=0)
        a.op("s_mov_b32", "s97", 2)
        LH = newlbl("Lhalf")
        a.label(LH)
        pr = PR
        for k in range(4):
            a.op("v_lshlrev_b32", vr(pr + k), 16, vr(pr + k))
        accurate_exp(a, T3, pr, T0, T1, 60, 61, 62)
        bf16_round(a, T3, T3)
        a.op("v_mul_f32", vr(ZR), "-" + vr(T3), vr(DT))
        a.op("v_mul_f32", vr(ZI), vr(pr + 1), vr(DT))
        a.op("v_mul_f32", vr(CP_), vr(pr + 2), vr(DT))
        a.op("v_mul_f32", vr(CP_ + 1), vr(pr + 3), vr(DT))
        a.op("v_add_f32", vr(CP_), vr(CP_), vr(CP_))
        a.op("v_add_f32", vr(CP_ + 1), vr(CP_ + 1), vr(CP_ + 1))
        emit_interleaved([cexp_ops(d, P, 48 + 4 * i) for i, (d, P) in enumerate(((W1, 1), (W8, 8), (B1, 128), (B2, 256), (B4, 512), (B8, 1024)))])
        emit_interleaved([cmul_ops(W2, W1, W1, 48), cmul_ops(A1, CP_, B1, 50), cmul_ops(A2, CP_, B2, 52), cmul_ops(A4, CP_, B4, 54), cmul_ops(A8, CP_, B8, 56), cmul_ops(E2, W8, W8, 58), cmul_ops(BB2, B1, B1, 60)])
        emit_interleaved([cmul_ops(W4, W2, W2, 48), cmul_ops(A3, A2, B1, 50), cmul_ops(E4, E2, E2, 52), cmul_ops(A8, A8, W8, 54)])
        emit_interleaved([cmul_ops(E8, E4, E4, 48)])
        chains([(ST, None, W8, 0, 1), (E4, None, W8, 4, 1), (E8, None, W8, 8, 1), (E8, E4, W8, 12, 1)], 4, O_E, False)
        chains([(CP_, None, W1, 0, 1), (CP_, W4, W1, 4, 1), (A1, None, W1, 8, 1), (A1, W4, W1, 12, 1)], 4, O_G, True)
        do_tile(0, True)
        chains([(A2, W2, W2, 0, 1), (A3, W2, W2, 4, 1), (A4, W4, B1, 8, 2), (A4, W8, B1, 9, 2)], 4, O_G, True)
        do_tile(1, False)
        emit_interleaved([cmul_ops(E2, A8, BB2, 48), cmul_ops(E4, BB2, BB2, 50)])
        emit_interleaved([cmul_ops(E8, A8, E4, 48), cmul_ops(W2, E2, E4, 50)])
        chains([(A8, None, B1, 0, 1), (E2, None, B1, 2, 1), (E8, None, B1, 4, 1), (W2, None, B1, 6, 1)], 2, O_G, True)
        chains([(A2, None, None, 8, 1)], 1, O_G, True)
        do_tile(2, False)
        for k in range(4):
            a.op("v_mov_b32", vr(PR + k), vr(112 + k))
        a.op("s_sub_u32", "s97", "s97", 1)
        a.op("s_cmp_lg_u32", "s97", 0)
        a.branch("s_cbranch_scc1", LH)
        stamp(a)
        g, b8, g1_, g2_ = 160, 161, 162, 163
        a.op("v_lshrrev_b32", vr(g), 4, "v1")
        a.op("v_lshlrev_b32", vr(b8), 3, "v129")
        a.op("v_and_b32", vr(g1_), 1, vr(g))
        a.op("v_lshrrev_b32", vr(g2_), 1, vr(g))
        a.op("v_cmp_eq_u32", "s[8:9]", 0, vr(g2_))
        a.op("v_cmp_eq_u32", "s[10:11]", 2, vr(g))
        X0 = 168
        a.op("v_lshlrev_b32", vr(X0), 2, vr(g1_))
        a.op("v_lshl_add_u32", vr(X0), vr(g2_), 7, vr(X0))
        a.op("v_add_u32", vr(X0), vr(X0), vr(b8))
        a.op("v_lshl_add_u32", vr(X0), vr(X0), 2, "s38")
        for r in range(4):
            a.op("ds_write_b32", vr(X0), vr(KACC + r), "offset:%d" % (4 * r))
        st = []
        for r in range(4):
            X, Y, Z = 48 + 6 * r, 49 + 6 * r, 50 + 6 * r
            o = [("v_lshlrev_b32", vr(X), 7, vr(g)),
                 ("v_add_u32", vr(X), 258 + 2 * r, vr(X)),
                 ("v_lshlrev_b32", vr(Y), 8, vr(g)),
                 ("v_add_u32", vr(Y), 4 + [0, 4, 128, 132][r], vr(Y)),
                 ("v_cndmask_b32", vr(X), vr(Y), vr(X), "s[8:9]"),
                 ("v_add_u32", vr(X), vr(X), vr(b8)),
                 ("v_lshl_add_u32", vr(X), vr(X), 2, "s38"),
                 ("ds_write_b32", vr(X), vr(KACC + 4 + r))]
            X, Y, Z = 51 + 6 * r, 52 + 6 * r, 53 + 6 * r
            o2 = [("v_lshlrev_b32", vr(X), 9, vr(g)),
                  ("v_add_u32", vr(X), 1032 + 128 * r, vr(X)),
                  ("v_mov_b32", vr(Y), 2064)]
            if r == 0:
                o2 += [("v_mov_b32", vr(Z), 256), ("v_cndmask_b32", vr(Y), vr(Y), vr(Z), "s[10:11]")]
            o2 += [("v_cndmask_b32", vr(X), vr(Y), vr(X), "s[8:9]"),
                   ("v_add_u32", vr(X), vr(X), vr(b8)),
                   ("v_lshl_add_u32", vr(X), vr(X), 2, "s38"),
                   ("ds_write_b32", vr(X), vr(KACC + 8 + r))]
            st += [o, o2]
        emit_interleaved(st)
        J, FW = 171, 172
        a.op("v_lshlrev_b32", vr(J), 3, "v1")
        a.op("v_mov_b32", vr(FW), "v26")
        a.op("s_mov_b32", "s96", 4)
        L = newlbl("Lg")
        a.loop_label(L)
        st = []
        for i in range(8):
            xx = 196 + i
            st.append([("v_add_u32", vr(xx), i, vr(J)),
                       ("v_cvt_f32_u32", vr(xx), vr(xx)),
                       ("v_cvt_pk_bf16_f32", vr(xx), vr(xx), vr(xx)),
                       ("v_lshlrev_b32", vr(xx), 16, vr(xx)),
                       ("v_cvt_u32_f32", vr(xx), vr(xx)),
                       ("v_lshl_add_u32", vr(xx), vr(xx), 2, "s38"),
                       ("ds_read_b32", vr(176 + i), vr(xx))])
        emit_interleaved(st)
        a.op("v_add_u32", vr(J), 512, vr(J))
        a.waitcnt(lgkm=0)
        st = []
        for p in range(4):
            x0, x1 = 176 + 2 * p, 177 + 2 * p
            h = 204 + 2 * p
            st.append([("v_cvt_pk_bf16_f32", vr(184 + p), vr(x0), vr(x1)),
                       ("v_lshlrev_b32", vr(h), 16, vr(184 + p)),
                       ("v_and_b32", vr(h + 1), "0xffff0000", vr(184 + p)),
                       ("v_pk_add_f32", vr(h, 2), vr(x0, 2), vr(h, 2), "neg_lo:[0,1]", "neg_hi:[0,1]"),
                       ("v_cvt_pk_bf16_f32", vr(188 + p), vr(h), vr(h + 1))])
        emit_interleaved(st)
        a.op("ds_write_b128", vr(FW), "v[184:187]")
        a.op("ds_write_b128", vr(FW), "v[188:191]", "offset:4096")
        a.op("v_add_u32", vr(FW), 1024, vr(FW))
        a.op("s_sub_u32", "s96", "s96", 1)
        a.op("s_cmp_lg_u32", "s96", 0)
        a.loop_branch("s_cbranch_scc1", L)

    def tphase():
        a.op("s_setprio", 3)
        a.waitcnt(vm=8)
        rstamp(a)
        WF, KF, KV = 48, 220, 10
        for c in range(8):
            for tau in range(4):
                src = TW + 2 * c + (tau >> 1)
                if tau & 1: a.op("v_and_b32", vr(WF + 4 * c + tau), "0xffff0000", vr(src))
                else: a.op("v_lshlrev_b32", vr(WF + 4 * c + tau), 16, vr(src))
        for hp in range(2):
            for hh in range(2):
                h = 2 * hp + hh
                for row in range(7):
                    src = TK + 4 * row + h
                    a.op("v_lshlrev_b32", vr(220 + 14 * hh + 2 * row), 16, vr(src))
                    a.op("v_and_b32", vr(221 + 14 * hh + 2 * row), "0xffff0000", vr(src))
            for r in range(4):
                st = []
                for hh in range(2):
                    h = 2 * hp + hh
                    c0, c1 = 2 * h, 2 * h + 1
                    acc, pp, pk = 80 + 6 * hh, 82 + 6 * hh, 84 + 6 * hh
                    o = []
                    for ti, tau in enumerate((3, 2, 1, 0)):
                        krow = r + 3 - tau
                        kk = 220 + 14 * hh + 2 * krow
                        o += [("v_mul_f32", vr(pp), vr(WF + 4 * c0 + tau), vr(kk)),
                              ("v_mul_f32", vr(pp + 1), vr(WF + 4 * c1 + tau), vr(kk + 1)),
                              ("v_cvt_pk_bf16_f32", vr(pk), vr(pp), vr(pp + 1))]
                        if ti == 0:
                            o += [("v_lshlrev_b32", vr(acc), 16, vr(pk)), ("v_and_b32", vr(acc + 1), "0xffff0000", vr(pk))]
                        else:
                            o += [("v_lshlrev_b32", vr(pp), 16, vr(pk)), ("v_and_b32", vr(pp + 1), "0xffff0000", vr(pk)),
                                  ("v_pk_add_f32", vr(pp, 2), vr(acc, 2), vr(pp, 2)),
                                  ("v_cvt_pk_bf16_f32", vr(pk), vr(pp), vr(pp + 1)),
                                  ("v_lshlrev_b32", vr(acc), 16, vr(pk)), ("v_and_b32", vr(acc + 1), "0xffff0000", vr(pk))]
                    vsrc = TV + 4 * r + h
                    o += [("v_lshlrev_b32", vr(pp), 16, vr(vsrc)), ("v_and_b32", vr(pp + 1), "0xffff0000", vr(vsrc)),
                          ("v_pk_mul_f32", vr(pp, 2), vr(acc, 2), vr(pp, 2)),
                          ("v_cvt_pk_bf16_f32", vr(KV + 4 * r + h), vr(pp), vr(pp + 1))]
                    st.append(o)
                emit_interleaved(st)
        a.op("v_and_b32", "v120", 7, "v0")
        a.op("v_bfe_u32", "v121", "v0", 3, 5)
        a.op("v_lshrrev_b32", "v122", 2, "v120")
        a.op("v_mul_u32_u24", "v122", PAIR, "v122")
        a.op("v_and_b32", "v123", 3, "v120")
        a.op("v_mul_u32_u24", "v123", 8 * TS, "v123")
        a.op("v_lshl_add_u32", "v123", "v121", 3, "v123")
        a.op("v_add_u32", "v122", "v122", "v123")
        a.op("v_add_u32", "v122", ABLK, "v122")
        a.op("v_add_u32", "v123", 2 * PAIR, "v122")
        def scatter(base, va):
            for c in range(8):
                h = c >> 1; sel = "s101" if (c & 1) else "s100"
                d = 124 + 2 * (c & 1)
                a.op("v_perm_b32", vr(d), vr(base + 4 + h), vr(base + 0 + h), sel)
                a.op("v_perm_b32", vr(d + 1), vr(base + 12 + h), vr(base + 8 + h), sel)
                a.op("ds_write_b64", va, vr(d, 2), "offset:%d" % (c * TS))
        scatter(KV, "v123")
        a.waitcnt(vm=4)
        scatter(TU, "v122")
        a.op("v_lshrrev_b32", "v121", 4, "v142")
        a.op("v_and_b32", "v120", 15, "v142")
        a.op("v_mul_u32_u24", "v122", TS, "v121")
        a.op("v_lshl_add_u32", "v122", "v120", 4, "v122")
        a.op("v_add_u32", "v122", ABLK, "v122")
        a.op("v_add_u32", "v123", 2 * PAIR, "v122")
        a.op("s_mul_i32", "s41", "s91", 64 * XS)
        a.op("s_lshl_b32", "s36", "s97", 8)
        a.op("s_add_u32", "s41", "s41", "s36")
        a.op("v_mul_u32_u24", "v124", XS, "v121")
        a.op("v_lshl_add_u32", "v124", "v120", 4, "v124")
        a.op("v_add_u32", "v124", "s41", "v124")
        a.waitcnt(lgkm=0)
        lds_sync(12, 4)
        for i in range(8):
            va = "v122" if i < 4 else "v123"
            off = ((i >> 1) & 1) * PAIR + (i & 1) * 16 * TS
            a.op("ds_read_b64", vr(48 + 4 * i, 2), va, "offset:%d" % off)
            a.op("ds_read_b64", vr(50 + 4 * i, 2), va, "offset:%d" % (off + 8))
        for i in range(8):
            a.op("s_mov_b32", sr(96), (i & 3) * 16 * XS + (i >> 2) * 1024 * XS)
            a.waitcnt(lgkm=14 - 2 * i)
            a.op("buffer_store_dwordx4", vr(48 + 4 * i, 4), "v124", "s[32:35]", "s96", "offen", "sc1")
        a.waitcnt(vm=0)
        stamp(a)
        lds_sync(12, 8)
        rstamp(a)
        a.op("s_cmp_lg_u32", "s4", 4)
        a.branch("s_cbranch_scc1", "L_bw")
        a.op("s_lshl_b32", "s41", "s91", 4)
        a.op("s_add_u32", "s41", "s41", "s97")
        a.op("v_mov_b32", "v120", "s41")
        a.op("v_mov_b32", "v121", 1)
        a.op("v_cmp_eq_u32", "vcc", 0, "v1")
        a.op("s_and_saveexec_b64", "s[42:43]", "vcc")
        a.op("buffer_store_byte", "v121", "v120", "s[92:95]", 0, "offen", "sc1")
        a.op("s_mov_b64", "exec", "s[42:43]")
        a.op("s_lshr_b32", "s41", "s3", 4)
        a.op("s_lshl_b32", "s41", "s41", 4)
        a.op("v_mov_b32", "v121", "s41")
        a.op("s_mov_b32", "s97", 100000)
        LP = newlbl("Lpoll")
        a.label(LP)
        a.op("buffer_load_dwordx4", "v[124:127]", "v121", "s[92:95]", 0, "offen", "sc1")
        a.op("s_sub_u32", "s97", "s97", 1)
        a.waitcnt(vm=0)
        a.op("v_and_b32", "v124", "v124", "v125")
        a.op("v_and_b32", "v126", "v126", "v127")
        a.op("v_and_b32", "v124", "v124", "v126")
        a.op("v_readfirstlane_b32", "s96", "v124")
        a.op("s_cmp_eq_u32", "s97", 0)
        a.branch("s_cbranch_scc1", LP + "_out")
        a.op("s_cmp_eq_u32", "s96", "0x01010101")
        a.branch("s_cbranch_scc1", LP + "_out")
        a.branch("s_branch", LP)
        a.label(LP + "_out")
        a.op("v_mov_b32", "v120", 1)
        a.op("v_mov_b32", "v122", CNT + 8)
        a.op("ds_write_b32", "v122", "v120")
        a.waitcnt(lgkm=0)
        a.label("L_bw")
        wait_flag()
        x_loads()

    def conv(nf):
        for i in range(32):
            a.op("v_mov_b32", vr(ACC + i), 0)
        a.waitcnt(lgkm=0)
        VA = 8
        def issueA(buf, aoff):
            for jj in range(2):
                for rb in range(2):
                    off = aoff + 4096 * (1 - jj) + 128 * (1 - rb)
                    t = ta(buf, jj, rb)
                    a.op("ds_read_b64", vr(t, 2), vr(VA), "offset:%d" % off)
                    a.op("ds_read_b64", vr(t + 2, 2), vr(VA), "offset:%d" % (off + 32))
        def step(p, buf):
            nd = 4 if p == 0 else 2
            dd = []
            for f in range(nf):
                for d in range(nd):
                    if d == 0:
                        for k in range(4):
                            dd.append(("v_mov_b32_dpp", vr(tb(buf ^ 1, f, 0) + k), vr(tb(buf, f, 0) + k), "row_shr:1", "row_mask:0xf", "bank_mask:0xf", "bound_ctrl:0"))
                    else:
                        for k in range(4):
                            dd.append(("v_mov_b32_dpp", vr(tb(buf ^ 1, f, d) + k), vr(tb(buf, f, d - 1) + k), "row_ror:1", "row_mask:0xf", "bank_mask:0xf"))
                        for k in range(4):
                            dd.append(("v_mov_b32_dpp", vr(tb(buf ^ 1, f, d) + k), vr(tb(buf, f, d) + k), "row_shr:1", "row_mask:0xf", "bank_mask:0xf"))
            mf = []
            for jj in range(2):
                j = 2 * p + jj
                for c in range(j, 4):
                    d = c - j
                    for f in range(nf):
                        for rb in range(2):
                            acc = ACC + 8 * c + 4 * rb
                            mf.append(("v_mfma_f32_16x16x32_bf16", vr(acc, 4), vr(ta(buf, jj, rb), 4), vr(tb(buf, f, d), 4), vr(acc, 4)))
            per = -(-len(dd) // len(mf))
            di = 0
            for m in mf:
                a.op(*m)
                for _ in range(per):
                    if di < len(dd):
                        a.op(*dd[di]); di += 1
        for p in range(2):
            nd = 4 if p == 0 else 2
            stamp(a)
            build_copies(p)
            stamp(a)
            a.op("v_mov_b32", vr(VA), "v130")
            issueA(0, 256)
            for f in range(nf):
                for d in range(nd):
                    a.op("ds_read_b128", vr(tb(0, f, d), 4), "v132", "offset:%d" % (1024 * d + 4096 * f))
            if nf == 1 and p == 0:
                for itn in range(8):
                    a.waitcnt(lgkm=0)
                    issueA(1, 0)
                    a.op("buffer_load_dwordx2", vr(30 + 2 * itn, 2), "v2", "s[12:15]", sr(68 + (itn >> 1)), "offen", "offset:%d" % (2048 * (itn & 1)))
                    step(p, 0)
                    a.op("v_subrev_u32", vr(VA), 512, vr(VA))
                    a.waitcnt(lgkm=0)
                    issueA(0, 256)
                    step(p, 1)
            else:
                a.op("s_mov_b32", "s96", 8)
                L = newlbl("Lcv")
                a.loop_label(L)
                a.waitcnt(lgkm=0)
                issueA(1, 0)
                step(p, 0)
                a.op("v_subrev_u32", vr(VA), 512, vr(VA))
                a.waitcnt(lgkm=0)
                issueA(0, 256)
                step(p, 1)
                a.op("s_sub_u32", "s96", "s96", 1)
                a.op("s_cmp_lg_u32", "s96", 0)
                a.loop_branch("s_cbranch_scc1", L)
            a.waitcnt(lgkm=0)
        for c in range(4):
            for rb in range(2):
                a.op("ds_read_b64", vr(TA + 4 * c + 2 * rb, 2), "v9", "offset:%d" % (1024 * c + 32 * rb))
        a.waitcnt(lgkm=0)
        for c in range(4):
            st = []
            for rb in range(2):
                acc = ACC + 8 * c + 4 * rb
                xs = TA + 4 * c + 2 * rb
                for h in range(2):
                    t = 48 + 8 * (2 * rb + h)
                    st.append([("v_cvt_pk_bf16_f32", vr(t), vr(acc + 2 * h), vr(acc + 2 * h + 1)),
                               ("v_lshlrev_b32", vr(t + 2), 16, vr(xs + h)),
                               ("v_and_b32", vr(t + 3), "0xffff0000", vr(xs + h)),
                               ("v_mul_f32", vr(t + 2), "s85", vr(t + 2)),
                               ("v_mul_f32", vr(t + 3), "s85", vr(t + 3)),
                               ("v_cvt_pk_bf16_f32", vr(t + 1), vr(t + 2), vr(t + 3)),
                               ("v_lshlrev_b32", vr(t + 2), 16, vr(t)),
                               ("v_and_b32", vr(t + 3), "0xffff0000", vr(t)),
                               ("v_lshlrev_b32", vr(t + 4), 16, vr(t + 1)),
                               ("v_and_b32", vr(t + 5), "0xffff0000", vr(t + 1)),
                               ("v_pk_add_f32", vr(t + 2, 2), vr(t + 2, 2), vr(t + 4, 2)),
                               ("v_cvt_pk_bf16_f32", vr(120 + 2 * rb + h), vr(t + 2), vr(t + 3))])
            emit_interleaved(st)
            for rb in range(2):
                a.op("ds_write_b64", "v9", vr(120 + 2 * rb, 2), "offset:%d" % (1024 * c + 32 * rb))
        a.waitcnt(lgkm=0)
        stamp(a)
        lds_sync(4 if nf == 1 else 0, 4)
        stamp(a)
        for ch in range(4):
            a.op("ds_read_b128", vr(48 + 4 * ch, 4), "v7" if ch < 2 else "v141", "offset:%d" % ((ch & 1) * PAIR))
        a.waitcnt(vm=0, lgkm=0)
        for r in range(8):
            sel = "s101" if (r & 1) else "s100"
            d = 70 + 2 * (r & 3)
            if nf == 2:
                for h in range(2):
                    a.op("v_perm_b32", vr(d + h), vr(48 + 4 * (2 * h + 1) + (r >> 1)), vr(48 + 4 * (2 * h) + (r >> 1)), sel)
            else:
                st = []
                for h in range(2):
                    t = 120 + 6 * h
                    st.append([("v_perm_b32", vr(t), vr(48 + 4 * (2 * h + 1) + (r >> 1)), vr(48 + 4 * (2 * h) + (r >> 1)), sel),
                               ("v_lshlrev_b32", vr(t + 2), 16, vr(t)),
                               ("v_and_b32", vr(t + 3), "0xffff0000", vr(t)),
                               ("v_lshlrev_b32", vr(t + 4), 16, vr(30 + 2 * r + h)),
                               ("v_and_b32", vr(t + 5), "0xffff0000", vr(30 + 2 * r + h)),
                               ("v_pk_mul_f32", vr(t + 2, 2), vr(t + 2, 2), vr(t + 4, 2)),
                               ("v_cvt_pk_bf16_f32", vr(d + h), vr(t + 2), vr(t + 3))])
                emit_interleaved(st)
            a.op("buffer_store_dwordx2", vr(d, 2), "v3", "s[28:31]", sr(68 + r), "offen")

    a.op("s_cmp_ge_u32", "s4", 4)
    a.branch("s_cbranch_scc1", "L_B")
    kgen()
    stamp(a)
    a.waitcnt(lgkm=0)
    wait_flag()
    x_loads()
    a.waitcnt(vm=0)
    stamp(a)
    zero_pad_and_master()
    conv(2)
    a.branch("s_branch", "L_done")
    a.label("L_B")
    if STAMP: stamp_n[0] = 1
    tphase()
    a.op("s_setprio", 2)
    stamp(a)
    rstamp(a)
    for it in range(4):
        a.op("ds_write_b128", "v26", vr(96 + 4 * it, 4), "offset:%d" % (1024 * it))
    a.waitcnt(vm=0)
    stamp(a)
    zero_pad_and_master()
    conv(1)
    a.label("L_done")
    if STAMP:
        a.waitcnt(vm=0)
        stamp(a)
        rstamp(a)
        a.op("s_cmp_lg_u32", "s4", 4)
        a.branch("s_cbranch_scc1", "L_nort")
        srd(a, 32, 54, 32 << 20)
        a.op("s_lshl_b32", "s41", "s2", 5)
        a.op("s_add_u32", "s41", "s41", 16 << 20)
        a.op("v_lshlrev_b32", "v2", 2, "v1")
        a.op("v_add_u32", "v2", "s41", "v2")
        a.op("v_cmp_gt_u32", "vcc", 8, "v1")
        a.op("s_and_saveexec_b64", "s[42:43]", "vcc")
        a.op("buffer_store_dword", "v252", "v2", "s[32:35]", 0, "offen")
        a.op("s_mov_b64", "exec", "s[42:43]")
        a.label("L_nort")
        a.op("s_cmp_lg_u32", "s2", int(STAMP))
        a.branch("s_cbranch_scc1", "L_end")
        a.op("v_lshlrev_b32", "v2", 2, "v1")
        a.op("s_and_b32", "s5", "s4", 3)
        a.op("s_lshr_b32", "s6", "s4", 2)
        a.op("s_cmp_ge_u32", "s5", 2)
        a.branch("s_cbranch_scc1", "L_end")
        a.op("s_lshl_b32", "s5", "s5", 1)
        a.op("s_add_u32", "s5", "s5", "s6")
        a.op("s_lshl_b32", "s5", "s5", 6)
        a.op("v_add_u32", "v2", "s5", "v2")
        a.op("v_cmp_gt_u32", "vcc", 16, "v1")
        a.op("s_and_saveexec_b64", "s[42:43]", "vcc")
        a.op("buffer_store_dword", "v251", "v2", "s[92:95]", 0, "offen")
    a.label("L_end")
    a.op("s_endpgm")

def main(out):
    a = Asm()
    gen(a)
    txt = HEADER
    txt += "; @launch grid=(256,1,1) block=(512,1,1) lds=%d\n" % LDS_K2
    txt += '.amdgcn_target "amdgcn-amd-amdhsa--gfx950"\n.text\n'
    txt += a.text()
    txt += '.section .rodata,"a"\n.p2align 6\n' + kd(KN, 256 if STAMP else 248)
    open(out, "w").write(txt)
    print("instructions:", a.n_ins, "bytes:", len(txt))

if __name__ == "__main__":
    main(sys.argv[1] if len(sys.argv) > 1 else "concat_heads__ssm_conv_s4d__ssm_conv_h3__prompt.s")
```

```python
import struct, sys, os
import numpy as np
from asmgen import Asm, vr, sr
from gen1_lib import srd, hexf, HEADER, kd, accurate_exp, bf16_round, L2E_HI, L2E_LO, LN2, I2PI_HI, I2PI_LO

STAMP = os.environ.get("STAMP")
stamp_n = [0]
def stamp(a):
    if not STAMP: return
    i = stamp_n[0]; stamp_n[0] += 1
    a.op("s_memtime", "s[42:43]")
    a.waitcnt(lgkm=0)
    a.op("v_writelane_b32", vr(251), "s42", i)

KN = "concat_heads__ssm_conv_s4d__ssm_conv_h3__prompt_kernel"
TS = 264
XS = int(os.environ.get("XS", "4352"))
ABLK = 24224
BBLK = 16736
PAIR = ABLK + BBLK
O_CP, O_MS, O_HF = 0, 8480, 12640
CNT = 20832
LDS_K2 = 4 * PAIR
RS = 544
O_E, O_G = 0, 16 * RS
lblc = [0]
def newlbl(p="L"):
    lblc[0] += 1
    return "%s_%d" % (p, lblc[0])

rt_n = [0]
def rstamp(a):
    if not STAMP: return
    i = rt_n[0]; rt_n[0] += 1
    a.op("s_memrealtime", "s[42:43]")
    a.waitcnt(lgkm=0)
    a.op("v_writelane_b32", vr(252), "s42", i)

def gen(a):
    a.raw(".p2align 8")
    a.raw(".globl %s" % KN)
    a.raw(".type %s,@function" % KN)
    a.raw(KN + ":")
    a.op("s_cmp_ge_u32", "s2", 256)
    a.branch("s_cbranch_scc1", "L_end")
    a.op("s_load_dwordx8", "s[44:51]", "s[0:1]", 8)
    a.op("s_load_dwordx4", "s[64:67]", "s[0:1]", 40)
    a.op("s_load_dwordx8", "s[68:75]", "s[0:1]", 56)
    a.op("s_load_dwordx2", "s[98:99]", "s[0:1]", 0)
    a.op("s_load_dwordx4", "s[76:79]", "s[0:1]", 88)
    a.op("s_load_dwordx4", "s[80:83]", "s[0:1]", 104)
    a.op("s_load_dwordx2", "s[54:55]", "s[0:1]", 120)
    a.op("s_and_b32", "s3", "s2", 7)
    a.op("s_lshl_b32", "s3", "s3", 5)
    a.op("s_lshr_b32", "s4", "s2", 3)
    a.op("s_add_u32", "s3", "s3", "s4")
    a.op("v_lshrrev_b32", "v1", 6, "v0")
    a.op("v_readfirstlane_b32", "s4", "v1")
    a.op("v_and_b32", "v1", 63, "v0")
    a.op("s_lshl_b32", "s5", "s3", 3)
    a.op("s_and_b32", "s7", "s4", 3)
    a.op("s_lshr_b32", "s6", "s4", 2)
    a.op("s_mul_i32", "s38", "s7", PAIR)
    a.op("s_mul_i32", "s39", "s6", ABLK)
    a.op("s_add_u32", "s38", "s38", "s39")
    a.op("s_lshl_b32", "s36", "s3", 2)
    a.op("s_add_u32", "s7", "s7", "s36")
    a.op("v_mov_b32", "v120", CNT)
    a.op("v_mov_b32", "v122", 0)
    a.op("v_mov_b32", "v123", 0)
    a.op("v_cmp_eq_u32", "vcc", 0, "v0")
    a.op("s_and_saveexec_b64", "s[42:43]", "vcc")
    a.op("ds_write_b64", "v120", "v[122:123]")
    a.op("ds_write_b64", "v120", "v[122:123]", "offset:8")
    a.op("ds_write_b64", "v120", "v[122:123]", "offset:16")
    a.op("s_mov_b64", "exec", "s[42:43]")
    a.waitcnt(lgkm=0)
    a.op("s_barrier")
    stamp(a)
    rstamp(a)
    a.op("s_lshr_b32", "s36", "s7", 1)
    a.op("s_lshl_b32", "s36", "s36", 2)
    a.op("s_add_u32", "s64", "s64", "s36"); a.op("s_addc_u32", "s65", "s65", 0)
    a.op("s_load_dword", "s87", "s[64:65]", 0)
    a.op("s_cmp_ge_u32", "s4", 4)
    a.op("s_cselect_b32", "s66", "s78", "s66")
    a.op("s_cselect_b32", "s67", "s79", "s67")
    a.op("s_add_u32", "s66", "s66", "s36"); a.op("s_addc_u32", "s67", "s67", 0)
    a.op("s_load_dword", "s84", "s[66:67]", 0)
    a.op("s_lshl_b32", "s52", "s7", 12)
    a.op("v_lshlrev_b32", "v6", 4, "v1")
    a.op("v_add_u32", "v6", "s52", "v6")
    a.op("s_mul_i32", "s53", "s6", 1024 * XS)
    a.op("s_mul_i32", "s41", "s7", XS)
    a.op("v_lshlrev_b32", "v143", 4, "v1")
    a.op("v_add_u32", "v143", "s41", "v143")
    a.op("s_cmp_ge_u32", "s4", 4)
    a.branch("s_cbranch_scc1", "L_Bloads")
    srd(a, 8, 44, 262144); srd(a, 16, 46, 262144); srd(a, 20, 48, 262144); srd(a, 56, 50, 262144)
    a.op("s_lshl_b32", "s41", "s7", 8)
    a.op("v_lshlrev_b32", "v28", 1, "v1")
    a.op("v_add_u32", "v28", "s41", "v28")
    PR = 30
    for k, s in enumerate((8, 16, 20, 56)):
        a.op("buffer_load_ushort", vr(PR + k), "v28", sr(s, 4), 0, "offen")
    for k, s in enumerate((8, 16, 20, 56)):
        a.op("buffer_load_ushort", vr(112 + k), "v28", sr(s, 4), 0, "offen", "offset:128")
    a.branch("s_branch", "L_common")
    a.label("L_Bloads")
    srd(a, 24, 76, 4 << 20)
    for it in range(4):
        a.op("buffer_load_dwordx4", vr(96 + 4 * it, 4), "v6", "s[24:27]", 0, "offen", "offset:%d" % (1024 * it))
    a.op("s_lshl_b32", "s41", "s3", 5)
    a.op("s_add_u32", "s74", "s74", "s41"); a.op("s_addc_u32", "s75", "s75", 0)
    a.op("s_load_dwordx8", "s[8:15]", "s[74:75]", 0)
    a.op("v_and_b32", "v142", 255, "v0")
    a.op("v_lshlrev_b32", "v120", 14, "v142")
    a.op("v_add_u32", "v120", "s5", "v120")
    a.op("v_subrev_u32", "v122", 6144, "v120")
    a.op("v_subrev_u32", "v123", 2048, "v120")
    TK, TV, TU = 144, 166, 182
    for r in range(4):
        a.op("s_mov_b32", sr(56 + r), 4096 * r)
    def rl(dst):
        for r in range(8):
            a.op("buffer_load_dwordx2", vr(dst + 2 * r, 2), "v120", "s[16:19]", sr(56 + (r >> 1)), "offen", "offset:%d" % (2048 * (r & 1)))
    srd(a, 16, 98, 4 << 20)
    rl(TU)
    srd(a, 16, 70, 4 << 20)
    a.op("buffer_load_dwordx2", vr(TK, 2), "v122", "s[16:19]", 0, "offen")
    a.op("buffer_load_dwordx2", vr(TK + 2, 2), "v122", "s[16:19]", 0, "offen", "offset:2048")
    a.op("buffer_load_dwordx2", vr(TK + 4, 2), "v123", "s[16:19]", 0, "offen")
    rl(TK + 6)
    srd(a, 16, 72, 4 << 20)
    a.waitcnt(lgkm=0)
    for c in range(4):
        for tau in range(4):
            src = 8 + 2 * c + (tau >> 1)
            if tau & 1: a.op("s_and_b32", sr(44 + 4 * c + tau), sr(src), "0xffff0000")
            else: a.op("s_lshl_b32", sr(44 + 4 * c + tau), sr(src), 16)
    a.label("L_common")
    srd(a, 12, 68, 4 << 20)
    srd(a, 28, 80, 8 << 20)
    srd(a, 92, 82, 256)
    a.op("s_add_u32", "s39", "s38", O_MS)
    a.op("s_add_u32", "s40", "s38", O_HF)
    a.op("s_mov_b32", "s100", "0x05040100")
    a.op("s_mov_b32", "s101", "0x07060302")
    a.op("v_and_b32", "v8", 1, "v1")
    a.op("v_lshlrev_b32", "v8", 1, "v8")
    a.op("v_lshrrev_b32", "v9", 4, "v1")
    a.op("v_lshrrev_b32", "v126", 1, "v1")
    a.op("v_xor_b32", "v9", "v9", "v126")
    a.op("v_and_b32", "v9", 1, "v9")
    a.op("v_add_u32", "v8", "v8", "v9")
    a.op("v_lshlrev_b32", "v8", 4, "v8")
    a.op("v_lshrrev_b32", "v9", 2, "v1")
    a.op("v_lshl_add_u32", "v8", "v9", 6, "v8")
    a.op("v_add_u32", "v26", "s40", "v8")
    a.op("v_lshlrev_b32", "v27", 4, "v1")
    a.op("s_add_u32", "s41", "s39", 64)
    a.op("v_add_u32", "v27", "s41", "v27")
    a.op("v_and_b32", "v129", 15, "v1")
    a.op("v_lshrrev_b32", "v125", 4, "v1")
    a.op("v_lshlrev_b32", "v126", 3, "v125")
    a.op("v_sub_u32", "v126", "v126", "v129")
    a.op("v_add_u32", "v126", 1023, "v126")
    a.op("v_lshrrev_b32", "v127", 2, "v126")
    a.op("v_lshlrev_b32", "v127", 5, "v127")
    a.op("v_and_b32", "v126", 3, "v126")
    a.op("v_lshl_add_u32", "v127", "v126", 3, "v127")
    a.op("s_sub_u32", "s41", "s38", 8 * (32 + 528))
    a.op("v_add_u32", "v130", "s41", "v127")
    a.op("v_lshrrev_b32", "v131", 1, "v125")
    a.op("v_and_b32", "v126", 1, "v125")
    a.op("v_lshlrev_b32", "v126", 5, "v126")
    a.op("v_lshrrev_b32", "v127", 2, "v129")
    a.op("v_xor_b32", "v127", "v127", "v131")
    a.op("v_and_b32", "v127", 1, "v127")
    a.op("v_lshl_add_u32", "v126", "v127", 4, "v126")
    a.op("v_lshl_add_u32", "v126", "v129", 6, "v126")
    a.op("v_add_u32", "v132", "s40", "v126")
    a.op("v_lshlrev_b32", "v9", 6, "v129")
    a.op("v_lshl_add_u32", "v9", "v125", 3, "v9")
    a.op("s_add_u32", "s41", "s39", 64)
    a.op("v_add_u32", "v9", "s41", "v9")
    a.op("v_lshlrev_b32", "v126", 3, "v1")
    a.op("s_add_u32", "s41", "s39", 64 + 2032)
    a.op("v_sub_u32", "v138", "s41", "v126")
    a.op("v_lshlrev_b32", "v139", 5, "v1")
    a.op("v_add_u32", "v139", "s38", "v139")
    a.op("v_mov_b32", "v140", "0xffff")
    a.op("v_and_b32", "v142", 255, "v0")
    a.op("v_lshlrev_b32", "v7", 4, "v142")
    a.op("s_mul_i32", "s41", "s6", ABLK)
    a.op("s_add_u32", "s41", "s41", O_MS + 64)
    a.op("v_add_u32", "v7", "s41", "v7")
    a.op("v_add_u32", "v141", 2 * PAIR, "v7")
    a.op("v_lshlrev_b32", "v2", 14, "v142")
    a.op("v_add_u32", "v2", "s5", "v2")
    a.op("v_lshlrev_b32", "v3", 15, "v142")
    a.op("s_lshl_b32", "s41", "s6", 11)
    a.op("s_add_u32", "s41", "s41", "s5")
    a.op("v_add_u32", "v3", "s41", "v3")
    for r in range(8):
        a.op("s_mov_b32", sr(68 + r), 4096 * r)
    a.waitcnt(lgkm=0)
    a.op("s_lshl_b32", "s85", "s84", 16)
    a.op("s_and_b32", "s86", "s84", "0xffff0000")
    a.op("s_lshl_b32", "s88", "s87", 16)
    a.op("s_and_b32", "s89", "s87", "0xffff0000")
    a.op("s_bitcmp1_b32", "s7", 0)
    a.op("s_cselect_b32", "s85", "s86", "s85")
    a.op("s_cselect_b32", "s88", "s89", "s88")

    ACC = 144
    TA = 176
    TBH = 208
    def tb(buf, f, d):
        if buf == 0: return TBH + 16 * f + 4 * d
        return 48 + 16 * f + 4 * d
    def ta(buf, jj, rb): return TA + 16 * buf + 8 * jj + 4 * rb
    KACC = 144

    def emit_interleaved(streams):
        n = max(len(s) for s in streams)
        for i in range(n):
            for s in streams:
                if i < len(s): a.op(*s[i])

    def lds_sync(off, target):
        a.op("v_mov_b32", "v120", CNT + off)
        a.op("v_mov_b32", "v121", 1)
        a.op("v_cmp_eq_u32", "vcc", 0, "v1")
        a.op("s_and_saveexec_b64", "s[42:43]", "vcc")
        a.op("ds_add_u32", "v120", "v121")
        a.op("s_mov_b64", "exec", "s[42:43]")
        L = newlbl("Lsp")
        a.label(L)
        a.op("ds_read_b32", "v121", "v120")
        a.waitcnt(lgkm=0)
        a.op("v_readfirstlane_b32", "s96", "v121")
        a.op("s_cmp_lt_u32", "s96", target)
        a.branch("s_cbranch_scc1", L)

    def wait_flag():
        a.op("v_mov_b32", "v122", CNT + 8)
        L = newlbl("Lxw")
        a.label(L)
        a.op("ds_read_b32", "v120", "v122")
        a.waitcnt(lgkm=0)
        a.op("v_readfirstlane_b32", "s96", "v120")
        a.op("s_cmp_eq_u32", "s96", 0)
        a.branch("s_cbranch_scc0", L + "_ok")
        a.op("s_sleep", 1)
        a.branch("s_branch", L)
        a.label(L + "_ok")

    def x_loads():
        for it in range(4):
            a.op("buffer_load_dwordx4", vr(10 + 4 * it, 4), "v143", "s[32:35]", "s53", "offen", "offset:%d" % (1024 * it), "sc1")

    def q_loads():
        for r in range(8):
            a.op("buffer_load_dwordx2", vr(30 + 2 * r, 2), "v2", "s[12:15]", sr(68 + (r >> 1)), "offen", "offset:%d" % (2048 * (r & 1)))

    def zero_pad_and_master(master=False):
        a.op("v_lshlrev_b32", "v120", 2, "v1")
        a.op("v_add_u32", "v120", "s39", "v120")
        a.op("v_mov_b32", "v121", 0)
        a.op("v_cmp_gt_u32", "vcc", 16, "v1")
        a.op("s_and_saveexec_b64", "s[42:43]", "vcc")
        a.op("ds_write_b32", "v120", "v121")
        a.op("s_mov_b64", "exec", "s[42:43]")
        for it in range(0):
            a.op("ds_write_b128", "v27", vr(10 + 4 * it, 4), "offset:%d" % (1024 * it))

    def build_copies(p):
        a.op("v_add_u32", "v133", 2048 * p, "v138")
        a.op("v_mov_b32", "v134", "v139")
        a.op("v_mov_b32", "v135", "v1")
        a.op("s_mov_b32", "s96", 5)
        L = newlbl("Lcp")
        a.loop_label(L)
        a.op("ds_read_b64", "v[120:121]", "v133")
        a.op("ds_read_b64", "v[122:123]", "v133", "offset:8")
        a.op("v_cmp_gt_u32", "vcc", 263, "v135")
        a.op("v_subrev_u32", "v133", 512, "v133")
        a.op("v_add_u32", "v135", 64, "v135")
        a.waitcnt(lgkm=0)
        N0, N1, N2, N3 = 120, 121, 122, 123
        Q = 240
        a.op("v_alignbit_b32", vr(Q + 0), vr(N3), vr(N3), 16)
        a.op("v_alignbit_b32", vr(Q + 1), vr(N2), vr(N2), 16)
        a.op("v_bfi_b32", vr(Q + 2), "v140", vr(N3), vr(N2))
        a.op("v_bfi_b32", vr(Q + 3), "v140", vr(N2), vr(N1))
        a.op("v_mov_b32", vr(Q + 4), vr(Q + 1))
        a.op("v_alignbit_b32", vr(Q + 5), vr(N1), vr(N1), 16)
        a.op("v_mov_b32", vr(Q + 6), vr(Q + 3))
        a.op("v_bfi_b32", vr(Q + 7), "v140", vr(N1), vr(N0))
        a.op("s_and_saveexec_b64", "s[42:43]", "vcc")
        a.op("ds_write_b128", "v134", vr(Q, 4))
        a.op("ds_write_b128", "v134", vr(Q + 4, 4), "offset:16")
        a.op("s_mov_b64", "exec", "s[42:43]")
        a.op("v_add_u32", "v134", 2048, "v134")
        a.op("s_sub_u32", "s96", "s96", 1)
        a.op("s_cmp_lg_u32", "s96", 0)
        a.loop_branch("s_cbranch_scc1", L)
        a.waitcnt(lgkm=0)

    def kgen():
        a.op("s_mov_b32", "s60", hexf(L2E_HI)); a.op("s_mov_b32", "s61", hexf(L2E_LO)); a.op("s_mov_b32", "s62", hexf(LN2))
        a.op("s_mov_b32", "s63", hexf(I2PI_HI)); a.op("s_mov_b32", "s90", hexf(I2PI_LO))
        T0, T1, T2, T3 = 240, 241, 242, 243
        ZR, ZI, CP_ = 38, 39, 36
        DT = 29
        a.op("v_mov_b32", vr(T2), "s88")
        accurate_exp(a, DT, T2, T0, T1, 60, 61, 62)
        bf16_round(a, DT, DT)
        a.op("v_lshlrev_b32", "v246", 2, "v1")
        a.op("v_add_u32", "v246", "s38", "v246")
        a.op("v_mul_u32_u24", "v247", RS, "v129")
        a.op("v_lshrrev_b32", vr(T0), 4, "v1")
        a.op("v_lshlrev_b32", vr(T0), 4, vr(T0))
        a.op("v_add3_u32", "v247", "v247", vr(T0), "s38")
        for i in range(12):
            a.op("v_mov_b32", vr(KACC + i), 0)
        W1, W2, W4, W8 = 160, 162, 164, 166
        B1, B2, B4, B8 = 168, 170, 172, 174
        A1, A2, A3, A4, A8 = 176, 178, 180, 182, 184
        E2, E4, E8, BB2 = 186, 188, 190, 192
        ST = 194
        EFH, EFL, GF, GFL = 96, 196, 216, 10
        CH = [dict(CX=48 + 12 * k, CY=50 + 12 * k, TP=52 + 12 * k, HF=54 + 12 * k, T4=56 + 12 * k, T5=57 + 12 * k, VW=58 + 12 * k) for k in range(4)]
        def cmul_ops(d, x, y, tp):
            return [("v_pk_mul_f32", vr(tp, 2), vr(x, 2), vr(y, 2), "op_sel:[0,0]", "op_sel_hi:[0,1]"),
                    ("v_pk_fma_f32", vr(d, 2), vr(x, 2), vr(y, 2), vr(tp, 2), "op_sel:[1,1,0]", "op_sel_hi:[1,0,1]", "neg_lo:[1,0,0]", "neg_hi:[0,0,0]")]
        def wr_ops(c, src, neg):
            ni = "-" if neg else ""
            return [("v_cvt_pk_bf16_f32", vr(c["T4"]), vr(src), ni + vr(src + 1)),
                    ("v_lshlrev_b32", vr(c["HF"]), 16, vr(c["T4"])),
                    ("v_and_b32", vr(c["HF"] + 1), "0xffff0000", vr(c["T4"])),
                    ("v_pk_add_f32", vr(c["HF"], 2), vr(src, 2), vr(c["HF"], 2), "neg_lo:[0,1]", "neg_hi:[%d,1]" % (1 if neg else 0)),
                    ("v_cvt_pk_bf16_f32", vr(c["T5"]), vr(c["HF"]), vr(c["HF"] + 1)),
                    ("ds_write2_b32", vr(c["VW"]), vr(c["T4"]), vr(c["T5"]), "offset0:0", "offset1:64")]
        def cexp_ops(d, P, t):
            t0, t1, t2, t3 = t, t + 1, t + 2, t + 3
            return [("v_mul_f32", vr(t2), hexf(float(P)), vr(ZR)),
                    ("v_mul_f32", vr(t0), "s60", vr(t2)),
                    ("v_fma_f32", vr(t1), vr(t2), "s60", "-" + vr(t0)),
                    ("v_fma_f32", vr(t1), vr(t2), "s61", vr(t1)),
                    ("v_exp_f32", vr(t3), vr(t0)),
                    ("v_mul_f32", vr(t1), "s62", vr(t1)),
                    ("v_mul_f32", vr(t2), hexf(float(P)), vr(ZI)),
                    ("v_fma_f32", vr(t3), vr(t3), vr(t1), vr(t3)),
                    ("v_mul_f32", vr(t0), "s63", vr(t2)),
                    ("v_fma_f32", vr(t1), vr(t2), "s63", "-" + vr(t0)),
                    ("v_fma_f32", vr(t1), vr(t2), "s90", vr(t1)),
                    ("v_fract_f32", vr(t0), vr(t0)),
                    ("v_add_f32", vr(t0), vr(t0), vr(t1)),
                    ("v_cos_f32", vr(d), vr(t0)),
                    ("v_sin_f32", vr(d + 1), vr(t0)),
                    ("v_mul_f32", vr(d), vr(d), vr(t3)),
                    ("v_mul_f32", vr(d + 1), vr(d + 1), vr(t3))]
        def chains(specs, n, tab, neg):
            st = []
            for c, (x, y, step, row0, rs) in zip(CH, specs):
                if y is None: o = [("v_mov_b32", vr(c["CX"]), vr(x)), ("v_mov_b32", vr(c["CX"] + 1), vr(x + 1))]
                else: o = cmul_ops(c["CX"], x, y, c["TP"])
                o.append(("v_add_u32", vr(c["VW"]), tab + row0 * RS, "v246"))
                st.append(o)
            emit_interleaved(st)
            if n == 1:
                emit_interleaved([wr_ops(c, c["CX"], neg) for c, _ in zip(CH, specs)]); return
            if n > 2:
                a.op("s_mov_b32", "s96", n // 2)
                L = newlbl("Lch")
                a.loop_label(L)
            st = []
            for c, (x, y, step, row0, rs) in zip(CH, specs):
                o = cmul_ops(c["CY"], c["CX"], step, c["TP"]) + wr_ops(c, c["CX"], neg) + [("v_add_u32", vr(c["VW"]), rs * RS, vr(c["VW"]))]
                o += cmul_ops(c["CX"], c["CY"], step, c["TP"]) + wr_ops(c, c["CY"], neg) + [("v_add_u32", vr(c["VW"]), rs * RS, vr(c["VW"]))]
                st.append(o)
            emit_interleaved(st)
            if n > 2:
                a.op("s_sub_u32", "s96", "s96", 1)
                a.op("s_cmp_lg_u32", "s96", 0)
                a.loop_branch("s_cbranch_scc1", L)
        def do_tile(t, first):
            for ks in range(4):
                a.op("ds_read_b128", vr(GF + 4 * ks, 4), "v247", "offset:%d" % (O_G + 64 * ks))
                a.op("ds_read_b128", vr(GFL + 4 * ks, 4), "v247", "offset:%d" % (O_G + 256 + 64 * ks))
            if first:
                for ks in range(4):
                    a.op("ds_read_b128", vr(EFH + 4 * ks, 4), "v247", "offset:%d" % (O_E + 64 * ks))
                    a.op("ds_read_b128", vr(EFL + 4 * ks, 4), "v247", "offset:%d" % (O_E + 256 + 64 * ks))
            a.waitcnt(lgkm=0)
            acc = KACC + 4 * t
            for ks in range(4):
                a.op("v_mfma_f32_16x16x32_bf16", vr(acc, 4), vr(GFL + 4 * ks, 4), vr(EFH + 4 * ks, 4), vr(acc, 4))
                a.op("v_mfma_f32_16x16x32_bf16", vr(acc, 4), vr(GF + 4 * ks, 4), vr(EFL + 4 * ks, 4), vr(acc, 4))
                a.op("v_mfma_f32_16x16x32_bf16", vr(acc, 4), vr(GF + 4 * ks, 4), vr(EFH + 4 * ks, 4), vr(acc, 4))
        a.op("v_mov_b32", vr(ST), 1.0); a.op("v_mov_b32", vr(ST + 1), 0)
        a.waitcnt(vm=0)
        a.op("s_mov_b32", "s97", 2)
        LH = newlbl("Lhalf")
        a.label(LH)
        pr = PR
        for k in range(4):
            a.op("v_lshlrev_b32", vr(pr + k), 16, vr(pr + k))
        accurate_exp(a, T3, pr, T0, T1, 60, 61, 62)
        bf16_round(a, T3, T3)
        a.op("v_mul_f32", vr(ZR), "-" + vr(T3), vr(DT))
        a.op("v_mul_f32", vr(ZI), vr(pr + 1), vr(DT))
        a.op("v_mul_f32", vr(CP_), vr(pr + 2), vr(DT))
        a.op("v_mul_f32", vr(CP_ + 1), vr(pr + 3), vr(DT))
        a.op("v_add_f32", vr(CP_), vr(CP_), vr(CP_))
        a.op("v_add_f32", vr(CP_ + 1), vr(CP_ + 1), vr(CP_ + 1))
        emit_interleaved([cexp_ops(d, P, 48 + 4 * i) for i, (d, P) in enumerate(((W1, 1), (W8, 8), (B1, 128), (B2, 256), (B4, 512), (B8, 1024)))])
        emit_interleaved([cmul_ops(W2, W1, W1, 48), cmul_ops(A1, CP_, B1, 50), cmul_ops(A2, CP_, B2, 52), cmul_ops(A4, CP_, B4, 54), cmul_ops(A8, CP_, B8, 56), cmul_ops(E2, W8, W8, 58), cmul_ops(BB2, B1, B1, 60)])
        emit_interleaved([cmul_ops(W4, W2, W2, 48), cmul_ops(A3, A2, B1, 50), cmul_ops(E4, E2, E2, 52), cmul_ops(A8, A8, W8, 54)])
        emit_interleaved([cmul_ops(E8, E4, E4, 48)])
        chains([(ST, None, W8, 0, 1), (E4, None, W8, 4, 1), (E8, None, W8, 8, 1), (E8, E4, W8, 12, 1)], 4, O_E, False)
        chains([(CP_, None, W1, 0, 1), (CP_, W4, W1, 4, 1), (A1, None, W1, 8, 1), (A1, W4, W1, 12, 1)], 4, O_G, True)
        do_tile(0, True)
        chains([(A2, W2, W2, 0, 1), (A3, W2, W2, 4, 1), (A4, W4, B1, 8, 2), (A4, W8, B1, 9, 2)], 4, O_G, True)
        do_tile(1, False)
        emit_interleaved([cmul_ops(E2, A8, BB2, 48), cmul_ops(E4, BB2, BB2, 50)])
        emit_interleaved([cmul_ops(E8, A8, E4, 48), cmul_ops(W2, E2, E4, 50)])
        chains([(A8, None, B1, 0, 1), (E2, None, B1, 2, 1), (E8, None, B1, 4, 1), (W2, None, B1, 6, 1)], 2, O_G, True)
        chains([(A2, None, None, 8, 1)], 1, O_G, True)
        do_tile(2, False)
        for k in range(4):
            a.op("v_mov_b32", vr(PR + k), vr(112 + k))
        a.op("s_sub_u32", "s97", "s97", 1)
        a.op("s_cmp_lg_u32", "s97", 0)
        a.branch("s_cbranch_scc1", LH)
        stamp(a)
        a.waitcnt(lgkm=0)
        a.op("v_mov_b32", "v120", CNT + 16)
        a.op("v_mov_b32", "v121", 1)
        a.op("v_cmp_eq_u32", "vcc", 0, "v1")
        a.op("s_and_saveexec_b64", "s[42:43]", "vcc")
        a.op("ds_add_u32", "v120", "v121")
        a.op("s_mov_b64", "exec", "s[42:43]")
        g, b8, g1_, g2_ = 160, 161, 162, 163
        a.op("v_lshrrev_b32", vr(g), 4, "v1")
        a.op("v_lshlrev_b32", vr(b8), 3, "v129")
        a.op("v_and_b32", vr(g1_), 1, vr(g))
        a.op("v_lshrrev_b32", vr(g2_), 1, vr(g))
        a.op("v_cmp_eq_u32", "s[8:9]", 0, vr(g2_))
        a.op("v_cmp_eq_u32", "s[10:11]", 2, vr(g))
        X0 = 168
        a.op("v_lshlrev_b32", vr(X0), 2, vr(g1_))
        a.op("v_lshl_add_u32", vr(X0), vr(g2_), 7, vr(X0))
        a.op("v_add_u32", vr(X0), vr(X0), vr(b8))
        a.op("v_lshl_add_u32", vr(X0), vr(X0), 2, "s38")
        for r in range(4):
            a.op("ds_write_b32", vr(X0), vr(KACC + r), "offset:%d" % (4 * r))
        st = []
        for r in range(4):
            X, Y, Z = 48 + 6 * r, 49 + 6 * r, 50 + 6 * r
            o = [("v_lshlrev_b32", vr(X), 7, vr(g)),
                 ("v_add_u32", vr(X), 258 + 2 * r, vr(X)),
                 ("v_lshlrev_b32", vr(Y), 8, vr(g)),
                 ("v_add_u32", vr(Y), 4 + [0, 4, 128, 132][r], vr(Y)),
                 ("v_cndmask_b32", vr(X), vr(Y), vr(X), "s[8:9]"),
                 ("v_add_u32", vr(X), vr(X), vr(b8)),
                 ("v_lshl_add_u32", vr(X), vr(X), 2, "s38"),
                 ("ds_write_b32", vr(X), vr(KACC + 4 + r))]
            X, Y, Z = 51 + 6 * r, 52 + 6 * r, 53 + 6 * r
            o2 = [("v_lshlrev_b32", vr(X), 9, vr(g)),
                  ("v_add_u32", vr(X), 1032 + 128 * r, vr(X)),
                  ("v_mov_b32", vr(Y), 4400)]
            if r == 0:
                o2 += [("v_mov_b32", vr(Z), 256), ("v_cndmask_b32", vr(Y), vr(Y), vr(Z), "s[10:11]")]
            o2 += [("v_cndmask_b32", vr(X), vr(Y), vr(X), "s[8:9]"),
                   ("v_add_u32", vr(X), vr(X), vr(b8)),
                   ("v_lshl_add_u32", vr(X), vr(X), 2, "s38"),
                   ("ds_write_b32", vr(X), vr(KACC + 8 + r))]
            st += [o, o2]
        emit_interleaved(st)
        J, FW = 171, 172
        a.op("v_lshlrev_b32", vr(J), 3, "v1")
        a.op("v_mov_b32", vr(FW), "v26")
        a.op("s_mov_b32", "s96", 4)
        L = newlbl("Lg")
        a.loop_label(L)
        st = []
        for i in range(8):
            xx = 196 + i
            st.append([("v_add_u32", vr(xx), i, vr(J)),
                       ("v_cvt_f32_u32", vr(xx), vr(xx)),
                       ("v_cvt_pk_bf16_f32", vr(xx), vr(xx), vr(xx)),
                       ("v_lshlrev_b32", vr(xx), 16, vr(xx)),
                       ("v_cvt_u32_f32", vr(xx), vr(xx)),
                       ("v_lshl_add_u32", vr(xx), vr(xx), 2, "s38"),
                       ("ds_read_b32", vr(176 + i), vr(xx))])
        emit_interleaved(st)
        a.op("v_add_u32", vr(J), 512, vr(J))
        a.waitcnt(lgkm=0)
        st = []
        for p in range(4):
            x0, x1 = 176 + 2 * p, 177 + 2 * p
            h = 204 + 2 * p
            st.append([("v_cvt_pk_bf16_f32", vr(184 + p), vr(x0), vr(x1)),
                       ("v_lshlrev_b32", vr(h), 16, vr(184 + p)),
                       ("v_and_b32", vr(h + 1), "0xffff0000", vr(184 + p)),
                       ("v_pk_add_f32", vr(h, 2), vr(x0, 2), vr(h, 2), "neg_lo:[0,1]", "neg_hi:[0,1]"),
                       ("v_cvt_pk_bf16_f32", vr(188 + p), vr(h), vr(h + 1))])
        emit_interleaved(st)
        a.op("ds_write_b128", vr(FW), "v[184:187]")
        a.op("ds_write_b128", vr(FW), "v[188:191]", "offset:4096")
        a.op("v_add_u32", vr(FW), 1024, vr(FW))
        a.op("s_sub_u32", "s96", "s96", 1)
        a.op("s_cmp_lg_u32", "s96", 0)
        a.loop_branch("s_cbranch_scc1", L)

    def tphase():
        a.op("s_setprio", 3)
        def scatter(base, va0, va1):
            for c in range(4):
                h = c >> 1; sel = "s101" if (c & 1) else "s100"
                d = 48 + 4 * c
                for i in range(4):
                    a.op("v_perm_b32", vr(d + i), vr(base + 2 * (2 * i + 1) + h), vr(base + 2 * (2 * i) + h), sel)
                a.op("ds_write_b128", va0 if c < 2 else va1, vr(d, 4), "offset:%d" % ((c & 1) * PAIR))
        a.op("v_subrev_u32", "v124", ABLK, "v7")
        a.op("v_subrev_u32", "v125", ABLK, "v141")
        a.op("v_mov_b32", "v122", CNT + 16)
        L = newlbl("Lua")
        a.label(L)
        a.op("ds_read_b32", "v120", "v122")
        a.waitcnt(lgkm=0)
        a.op("v_readfirstlane_b32", "s96", "v120")
        a.op("s_cmp_lt_u32", "s96", 4)
        a.branch("s_cbranch_scc1", L)
        a.waitcnt(vm=11)
        scatter(TU, "v124", "v125")
        a.op("v_mov_b32", "v120", CNT + 8)
        a.op("v_mov_b32", "v121", 1)
        a.waitcnt(lgkm=0)
        a.op("v_cmp_eq_u32", "vcc", 0, "v1")
        a.op("s_and_saveexec_b64", "s[42:43]", "vcc")
        a.op("ds_add_u32", "v120", "v121")
        a.op("s_mov_b64", "exec", "s[42:43]")
        for r in range(8):
            a.op("buffer_load_dwordx2", vr(TV + 2 * r, 2), "v2", "s[16:19]", sr(68 + (r >> 1)), "offen", "offset:%d" % (2048 * (r & 1)))
        a.waitcnt(vm=0)
        KV = 10
        for row in range(11):
            for h in range(2):
                src = TK + 2 * row + h
                a.op("v_lshlrev_b32", vr(200 + 4 * row + 2 * h), 16, vr(src))
                a.op("v_and_b32", vr(201 + 4 * row + 2 * h), "0xffff0000", vr(src))
        for r in range(8):
            st = []
            for h in range(2):
                c0, c1 = 2 * h, 2 * h + 1
                acc, pp, pk = 80 + 6 * h, 82 + 6 * h, 84 + 6 * h
                o = []
                for ti, tau in enumerate((3, 2, 1, 0)):
                    kk = 200 + 4 * (r + 3 - tau) + 2 * h
                    o += [("v_mul_f32", vr(pp), sr(44 + 4 * c0 + tau), vr(kk)),
                          ("v_mul_f32", vr(pp + 1), sr(44 + 4 * c1 + tau), vr(kk + 1)),
                          ("v_cvt_pk_bf16_f32", vr(pk), vr(pp), vr(pp + 1))]
                    if ti == 0:
                        o += [("v_lshlrev_b32", vr(acc), 16, vr(pk)), ("v_and_b32", vr(acc + 1), "0xffff0000", vr(pk))]
                    else:
                        o += [("v_lshlrev_b32", vr(pp), 16, vr(pk)), ("v_and_b32", vr(pp + 1), "0xffff0000", vr(pk)),
                              ("v_pk_add_f32", vr(pp, 2), vr(acc, 2), vr(pp, 2)),
                              ("v_cvt_pk_bf16_f32", vr(pk), vr(pp), vr(pp + 1)),
                              ("v_lshlrev_b32", vr(acc), 16, vr(pk)), ("v_and_b32", vr(acc + 1), "0xffff0000", vr(pk))]
                vsrc = TV + 2 * r + h
                o += [("v_lshlrev_b32", vr(pp), 16, vr(vsrc)), ("v_and_b32", vr(pp + 1), "0xffff0000", vr(vsrc)),
                      ("v_pk_mul_f32", vr(pp, 2), vr(acc, 2), vr(pp, 2)),
                      ("v_cvt_pk_bf16_f32", vr(KV + 2 * r + h), vr(pp), vr(pp + 1))]
                st.append(o)
            emit_interleaved(st)
        scatter(KV, "v7", "v141")
        stamp(a)
        a.waitcnt(lgkm=0)
        lds_sync(12, 4)

    def conv(nf):
        for i in range(32):
            a.op("v_mov_b32", vr(ACC + i), 0)
        a.waitcnt(lgkm=0)
        VA = 8
        def issueA(buf, aoff):
            for jj in range(2):
                for rb in range(2):
                    off = aoff + 4096 * (1 - jj) + 128 * (1 - rb)
                    t = ta(buf, jj, rb)
                    a.op("ds_read_b64", vr(t, 2), vr(VA), "offset:%d" % off)
                    a.op("ds_read_b64", vr(t + 2, 2), vr(VA), "offset:%d" % (off + 32))
        def step(p, buf):
            nd = 4 if p == 0 else 2
            dd = []
            for f in range(nf):
                for d in range(nd):
                    if d == 0:
                        for k in range(4):
                            dd.append(("v_mov_b32_dpp", vr(tb(buf ^ 1, f, 0) + k), vr(tb(buf, f, 0) + k), "row_shr:1", "row_mask:0xf", "bank_mask:0xf", "bound_ctrl:0"))
                    else:
                        for k in range(4):
                            dd.append(("v_mov_b32_dpp", vr(tb(buf ^ 1, f, d) + k), vr(tb(buf, f, d - 1) + k), "row_ror:1", "row_mask:0xf", "bank_mask:0xf"))
                        for k in range(4):
                            dd.append(("v_mov_b32_dpp", vr(tb(buf ^ 1, f, d) + k), vr(tb(buf, f, d) + k), "row_shr:1", "row_mask:0xf", "bank_mask:0xf"))
            mf = []
            for jj in range(2):
                j = 2 * p + jj
                for c in range(j, 4):
                    d = c - j
                    for f in range(nf):
                        for rb in range(2):
                            acc = ACC + 8 * c + 4 * rb
                            mf.append(("v_mfma_f32_16x16x32_bf16", vr(acc, 4), vr(ta(buf, jj, rb), 4), vr(tb(buf, f, d), 4), vr(acc, 4)))
            per = -(-len(dd) // len(mf))
            di = 0
            for m in mf:
                a.op(*m)
                for _ in range(per):
                    if di < len(dd):
                        a.op(*dd[di]); di += 1
        for p in range(2):
            nd = 4 if p == 0 else 2
            stamp(a)
            build_copies(p)
            stamp(a)
            a.op("v_mov_b32", vr(VA), "v130")
            issueA(0, 256)
            for f in range(nf):
                for d in range(nd):
                    a.op("ds_read_b128", vr(tb(0, f, d), 4), "v132", "offset:%d" % (1024 * d + 4096 * f))
            if nf == 1 and p == 0:
                for itn in range(8):
                    a.waitcnt(lgkm=0)
                    issueA(1, 0)
                    a.op("buffer_load_dwordx2", vr(30 + 2 * itn, 2), "v2", "s[12:15]", sr(68 + (itn >> 1)), "offen", "offset:%d" % (2048 * (itn & 1)))
                    step(p, 0)
                    a.op("v_subrev_u32", vr(VA), 512, vr(VA))
                    a.waitcnt(lgkm=0)
                    issueA(0, 256)
                    step(p, 1)
            else:
                a.op("s_mov_b32", "s96", 8)
                L = newlbl("Lcv")
                a.loop_label(L)
                a.waitcnt(lgkm=0)
                issueA(1, 0)
                step(p, 0)
                a.op("v_subrev_u32", vr(VA), 512, vr(VA))
                a.waitcnt(lgkm=0)
                issueA(0, 256)
                step(p, 1)
                a.op("s_sub_u32", "s96", "s96", 1)
                a.op("s_cmp_lg_u32", "s96", 0)
                a.loop_branch("s_cbranch_scc1", L)
            a.waitcnt(lgkm=0)
        for c in range(4):
            for rb in range(2):
                a.op("ds_read_b64", vr(TA + 4 * c + 2 * rb, 2), "v9", "offset:%d" % (1024 * c + 32 * rb))
        a.waitcnt(lgkm=0)
        for c in range(4):
            st = []
            for rb in range(2):
                acc = ACC + 8 * c + 4 * rb
                xs = TA + 4 * c + 2 * rb
                for h in range(2):
                    t = 48 + 8 * (2 * rb + h)
                    st.append([("v_cvt_pk_bf16_f32", vr(t), vr(acc + 2 * h), vr(acc + 2 * h + 1)),
                               ("v_lshlrev_b32", vr(t + 2), 16, vr(xs + h)),
                               ("v_and_b32", vr(t + 3), "0xffff0000", vr(xs + h)),
                               ("v_mul_f32", vr(t + 2), "s85", vr(t + 2)),
                               ("v_mul_f32", vr(t + 3), "s85", vr(t + 3)),
                               ("v_cvt_pk_bf16_f32", vr(t + 1), vr(t + 2), vr(t + 3)),
                               ("v_lshlrev_b32", vr(t + 2), 16, vr(t)),
                               ("v_and_b32", vr(t + 3), "0xffff0000", vr(t)),
                               ("v_lshlrev_b32", vr(t + 4), 16, vr(t + 1)),
                               ("v_and_b32", vr(t + 5), "0xffff0000", vr(t + 1)),
                               ("v_pk_add_f32", vr(t + 2, 2), vr(t + 2, 2), vr(t + 4, 2)),
                               ("v_cvt_pk_bf16_f32", vr(120 + 2 * rb + h), vr(t + 2), vr(t + 3))])
            emit_interleaved(st)
            for rb in range(2):
                a.op("ds_write_b64", "v9", vr(120 + 2 * rb, 2), "offset:%d" % (1024 * c + 32 * rb))
        a.waitcnt(lgkm=0)
        stamp(a)
        lds_sync(4 if nf == 1 else 0, 4)
        stamp(a)
        for ch in range(4):
            a.op("ds_read_b128", vr(48 + 4 * ch, 4), "v7" if ch < 2 else "v141", "offset:%d" % ((ch & 1) * PAIR))
        a.waitcnt(vm=0, lgkm=0)
        for r in range(8):
            sel = "s101" if (r & 1) else "s100"
            d = 70 + 2 * (r & 3)
            if nf == 2:
                for h in range(2):
                    a.op("v_perm_b32", vr(d + h), vr(48 + 4 * (2 * h + 1) + (r >> 1)), vr(48 + 4 * (2 * h) + (r >> 1)), sel)
            else:
                st = []
                for h in range(2):
                    t = 120 + 6 * h
                    st.append([("v_perm_b32", vr(t), vr(48 + 4 * (2 * h + 1) + (r >> 1)), vr(48 + 4 * (2 * h) + (r >> 1)), sel),
                               ("v_lshlrev_b32", vr(t + 2), 16, vr(t)),
                               ("v_and_b32", vr(t + 3), "0xffff0000", vr(t)),
                               ("v_lshlrev_b32", vr(t + 4), 16, vr(30 + 2 * r + h)),
                               ("v_and_b32", vr(t + 5), "0xffff0000", vr(30 + 2 * r + h)),
                               ("v_pk_mul_f32", vr(t + 2, 2), vr(t + 2, 2), vr(t + 4, 2)),
                               ("v_cvt_pk_bf16_f32", vr(d + h), vr(t + 2), vr(t + 3))])
                emit_interleaved(st)
            a.op("buffer_store_dwordx2", vr(d, 2), "v3", "s[28:31]", sr(68 + r), "offen")

    a.op("s_cmp_ge_u32", "s4", 4)
    a.branch("s_cbranch_scc1", "L_B")
    kgen()
    stamp(a)
    zero_pad_and_master()
    a.op("v_mov_b32", "v122", CNT + 8)
    LW = newlbl("Lxa")
    a.label(LW)
    a.op("ds_read_b32", "v120", "v122")
    a.waitcnt(lgkm=0)
    a.op("v_readfirstlane_b32", "s96", "v120")
    a.op("s_cmp_lt_u32", "s96", 4)
    a.branch("s_cbranch_scc1", LW)
    stamp(a)
    conv(2)
    a.branch("s_branch", "L_done")
    a.label("L_B")
    if STAMP: stamp_n[0] = 1
    tphase()
    a.op("s_setprio", 2)
    stamp(a)
    rstamp(a)
    for it in range(4):
        a.op("ds_write_b128", "v26", vr(96 + 4 * it, 4), "offset:%d" % (1024 * it))
    a.waitcnt(vm=0)
    stamp(a)
    zero_pad_and_master()
    conv(1)
    a.label("L_done")
    if STAMP:
        a.waitcnt(vm=0)
        stamp(a)
        rstamp(a)
        a.op("s_cmp_lg_u32", "s2", int(STAMP))
        a.branch("s_cbranch_scc1", "L_end")
        a.op("v_lshlrev_b32", "v2", 2, "v1")
        a.op("s_and_b32", "s5", "s4", 3)
        a.op("s_lshr_b32", "s6", "s4", 2)
        a.op("s_cmp_ge_u32", "s5", 2)
        a.branch("s_cbranch_scc1", "L_end")
        a.op("s_lshl_b32", "s5", "s5", 1)
        a.op("s_add_u32", "s5", "s5", "s6")
        a.op("s_lshl_b32", "s5", "s5", 6)
        a.op("v_add_u32", "v2", "s5", "v2")
        a.op("v_cmp_gt_u32", "vcc", 16, "v1")
        a.op("s_and_saveexec_b64", "s[42:43]", "vcc")
        a.op("buffer_store_dword", "v251", "v2", "s[92:95]", 0, "offen")
    a.label("L_end")
    a.op("s_endpgm")

def main(out):
    a = Asm()
    gen(a)
    txt = HEADER
    txt += "; @launch grid=(256,1,1) block=(512,1,1) lds=%d\n" % LDS_K2
    txt += '.amdgcn_target "amdgcn-amd-amdhsa--gfx950"\n.text\n'
    txt += a.text()
    txt += '.section .rodata,"a"\n.p2align 6\n' + kd(KN, 256 if STAMP else 248)
    open(out, "w").write(txt)
    print("instructions:", a.n_ins, "bytes:", len(txt))

if __name__ == "__main__":
    main(sys.argv[1] if len(sys.argv) > 1 else "concat_heads__ssm_conv_s4d__ssm_conv_h3__prompt.s")
```
